```python
import torch

def _softmax(x, axis=-1):
    return torch.softmax(x, dim=axis)
def _gelu(x):
    return torch.nn.functional.gelu(x, approximate="tanh")
def _silu(x):
    return torch.nn.functional.silu(x)
def _sigmoid(x):
    return torch.sigmoid(x)
def _layernorm(x, axis=-1, eps=1e-5):
    m = x.mean(dim=axis, keepdim=True)
    v = x.var(dim=axis, keepdim=True, unbiased=False)
    return (x - m) / torch.sqrt(v + eps)
def _scatter_add(tgt, idx, src, axis=0):
    return tgt.clone().index_add_(axis, idx, src)
def _segment_sum(src, seg, n):
    out = torch.zeros((n,) + src.shape[1:], dtype=src.dtype)
    return out.index_add_(0, seg, src)
def _pad(x, pw):
    flat = tuple(v for pair in reversed(pw) for v in pair)
    return torch.nn.functional.pad(x, flat)

kernel_name = 'recurrent_scan__gqa_block_cached__dense_activation_silu__decode'

def setup_inputs():

    _w = (lambda a: (lambda t: t.to(torch.bfloat16) if t.is_floating_point() else t)(torch.as_tensor(a)))
    def _A_setup():
        B, Sq, D = 1, 1, 512
        Hq, Hkv, Sk, Dh = 32, 32, 8192, 128
        assert Hq % Hkv == 0, (Hq, Hkv)
        return {
            "x": _w((lambda *s: torch.randn(*s, dtype=torch.bfloat16) * 0.05)(B, Sq, D)),
            "k_cache": _w((lambda *s: torch.randn(*s, dtype=torch.bfloat16) * 3.2)(B, Hkv, Sk, Dh)),
            "v_cache": _w((lambda *s: torch.randn(*s, dtype=torch.bfloat16) * 3.2)(B, Hkv, Sk, Dh)),
            "wq": _w((lambda *s: torch.randn(*s, dtype=torch.bfloat16) * 3.2)(D, Hq * Dh) * (D ** -0.5)),
            "wo": _w((lambda *s: torch.randn(*s, dtype=torch.bfloat16) * 3.2)(Hq * Dh, D) * ((Hq * Dh) ** -0.5)),
        }
    _A_in = _A_setup()

    def _B_setup():
        B, S, D, F = 1, 1, 512, 1376
        return {
            "x": _w((lambda *s: torch.randn(*s, dtype=torch.bfloat16) * 0.05)(B, S, D)),
            "w1": _w((lambda *s: torch.randn(*s, dtype=torch.bfloat16) * 3.2)(D, F) * (D ** -0.5)),
            "w2": _w((lambda *s: torch.randn(*s, dtype=torch.bfloat16) * 0.4)(F, D) * (F ** -0.5)),
        }
    _B_in = _B_setup()

    return {
        "A_x": _A_in["x"],
        "A_k_cache": _A_in["k_cache"],
        "A_v_cache": _A_in["v_cache"],
        "A_wq": _A_in["wq"],
        "A_wo": _A_in["wo"],
        "B_x": _B_in["x"],
        "B_w1": _B_in["w1"],
        "B_w2": _B_in["w2"],
    }

def reference(A_x, A_k_cache, A_v_cache, A_wq, A_wo, B_x, B_w1, B_w2):
    def _A_ref(x, k_cache, v_cache, wq, wo):
        B, Sq, D = x.shape
        Hq, Dh = 32, 128
        Hkv = k_cache.shape[1]
        rep = Hq // Hkv
        q = (lambda x, *d: x.permute(*d))((x @ wq).reshape(B, Sq, Hq, Dh), 0, 2, 1, 3)
        k = (lambda x, n, axis: torch.repeat_interleave(x, n, dim=axis))(k_cache, rep, axis=1)
        v = (lambda x, n, axis: torch.repeat_interleave(x, n, dim=axis))(v_cache, rep, axis=1)
        scores = torch.einsum("bhqd,bhkd->bhqk", q, k) * (Dh ** -0.5)
        p = _softmax(scores, axis=-1)
        o = torch.einsum("bhqk,bhkd->bhqd", p, v)
        return (lambda x, *d: x.permute(*d))(o, 0, 2, 1, 3).reshape(B, Sq, Hq * Dh) @ wo

    def _B_ref(x, w1, w2):
        h = torch.einsum("bsd,df->bsf", x, w1)
        h = _silu(h)
        out = torch.einsum("bsf,fd->bsd", h, w2)
        return out

    x = A_x
    xn = _layernorm(x, axis=-1)
    s = _A_ref(xn, A_k_cache, A_v_cache, A_wq, A_wo)
    g = _silu(_B_ref(xn, B_w1, B_w2))
    return x + s * g
```

```python
import re

TRANS = ("v_exp_f32", "v_log_f32", "v_rcp_f32", "v_rsq_f32", "v_sqrt_f32", "v_sin_f32", "v_cos_f32", "v_rcp_iflag_f32")

def regs_of(tok):
    tok = tok.strip()
    neg = tok.lstrip("-")
    if neg.startswith("abs(") or neg.startswith("|"):
        neg = neg.replace("abs(", "").replace(")", "").replace("|", "")
    tok = neg
    m = re.fullmatch(r"([vsa])\[(\d+):(\d+)\]", tok)
    if m:
        return [(m.group(1), i) for i in range(int(m.group(2)), int(m.group(3)) + 1)]
    m = re.fullmatch(r"([vsa])(\d+)", tok)
    if m:
        return [(m.group(1), int(m.group(2)))]
    if tok == "vcc": return [("s", "vcc_lo"), ("s", "vcc_hi")]
    if tok in ("vcc_lo", "vcc_hi"): return [("s", tok)]
    if tok == "exec": return [("s", "exec_lo"), ("s", "exec_hi")]
    if tok in ("exec_lo", "exec_hi"): return [("s", tok)]
    if tok == "m0": return [("s", "m0")]
    return []

class Ins:
    __slots__ = ("text", "mn", "cls", "w", "r", "dpp", "srcc", "wide_store_data", "passes", "dppsrc")

def parse(text):
    t = text.split(";")[0].strip()
    parts = t.split(None, 1)
    mn = parts[0]
    rest = parts[1] if len(parts) > 1 else ""
    ops = []
    depth = 0; cur = ""
    for ch in rest:
        if ch == "[": depth += 1
        if ch == "]": depth -= 1
        if ch == "," and depth == 0:
            ops.append(cur.strip()); cur = ""
        else:
            cur += ch
    if cur.strip(): ops.append(cur.strip())
    mods = ""
    if ops:
        last = ops[-1].split(None, 1)
        ops[-1] = last[0]
        mods = last[1] if len(last) > 1 else ""
    I = Ins(); I.text = text; I.mn = mn; I.w = set(); I.r = set(); I.dpp = False; I.srcc = set(); I.wide_store_data = set(); I.passes = 0
    I.dppsrc = set()
    R = lambda k: set(regs_of(ops[k])) if k < len(ops) else set()
    allr = lambda a: set().union(*[R(k) for k in range(a, len(ops))]) if len(ops) > a else set()
    base = mn.replace("_e32", "").replace("_e64", "").replace("_dpp", "")
    if mn.startswith("v_mfma"):
        I.cls = "mfma"; I.w = R(0); I.r = R(1) | R(2) | R(3); I.srcc = R(3)
        I.passes = 4 if "16x16x32" in mn else 8
    elif mn.startswith("v_"):
        I.cls = "trans" if base in TRANS else "valu"
        I.dpp = mn.endswith("_dpp") or "row_" in mods or "quad_perm" in mods
        if base.startswith("v_cmp"):
            I.w = R(0); I.r = allr(1)
        elif base in ("v_readlane_b32", "v_readfirstlane_b32"):
            I.w = R(0); I.r = allr(1)
        elif base.startswith("v_permlane"):
            I.w = R(0) | R(1); I.r = R(0) | R(1)
        elif base in ("v_fmac_f32", "v_dot2c_f32_bf16", "v_writelane_b32"):
            I.w = R(0); I.r = allr(0)
        elif base in ("v_div_scale_f32",) or "_co_" in base:
            I.w = R(0) | R(1); I.r = allr(2)
        elif base == "v_cndmask_b32" and len(ops) == 3:
            I.w = R(0); I.r = allr(1) | {("s", "vcc_lo"), ("s", "vcc_hi")}
        else:
            I.w = R(0); I.r = allr(1)
            if base == "v_div_fmas_f32": I.r |= {("s", "vcc_lo"), ("s", "vcc_hi")}
        if I.dpp:
            I.dppsrc = R(1)
            I.r |= R(0)
    elif mn.startswith("buffer_") or mn.startswith("global_"):
        I.cls = "vmem"
        if "load" in mn:
            if "lds" in mods.split() or "_lds_" in mn:
                I.r = allr(0)
            else:
                I.w = R(0); I.r = allr(1)
        elif "store" in mn:
            I.r = allr(0)
            if "x4" in mn or "x3" in mn:
                I.wide_store_data = R(0) if mn.startswith("buffer_") else R(1)
        else:
            I.r = allr(0)
            if "sc0" in mods.split(): I.w = R(0)
    elif mn.startswith("ds_"):
        I.cls = "ds"
        if mn.startswith("ds_read") or mn.startswith("ds_bpermute") or mn.startswith("ds_permute") or mn.startswith("ds_swizzle"):
            I.w = R(0); I.r = allr(1)
        else:
            I.r = allr(0)
    elif mn.startswith("s_load") or mn.startswith("s_memtime") or mn.startswith("s_memrealtime"):
        I.cls = "smem"; I.w = R(0); I.r = allr(1)
    elif mn in ("s_waitcnt", "s_barrier", "s_nop", "s_endpgm", "s_sleep", "s_setprio") or mn.startswith("s_cbranch") or mn == "s_branch":
        I.cls = "ctl"
    elif mn.startswith("s_cmp"):
        I.cls = "salu"; I.r = allr(0)
    elif mn.startswith("s_"):
        I.cls = "salu"; I.w = R(0); I.r = allr(1)
        if "saveexec" in mn: I.w |= {("s", "exec_lo"), ("s", "exec_hi")}
    else:
        raise ValueError("unknown instr " + text)
    return I

def need(P, C):
    n = 0
    pv = {x for x in P.w if x[0] == "v"}
    ps = {x for x in P.w if x[0] == "s"}
    cvr = {x for x in C.r if x[0] == "v"}
    csr = {x for x in C.r if x[0] == "s"}
    cvw = {x for x in C.w if x[0] == "v"}
    pvalu = P.cls in ("valu", "trans")
    cvalu = C.cls in ("valu", "trans")
    if pvalu:
        if pv & cvr:
            if cvalu and C.dpp: n = max(n, 2)
            if C.mn.startswith("v_readlane") or C.mn.startswith("v_readfirstlane"): n = max(n, 1)
            if C.mn.startswith("v_permlane"): n = max(n, 2)
            if C.cls == "mfma": n = max(n, 2)
            if P.cls == "trans" and (cvalu or C.cls == "mfma") : n = max(n, 1)
        if ps & csr:
            if cvalu: n = max(n, 2)
            if C.mn.startswith("v_readlane") or C.mn.startswith("v_writelane"): n = max(n, 4)
            if C.cls == "vmem": n = max(n, 5)
            if C.mn.startswith("v_div_fmas"): n = max(n, 4)
    if P.cls == "mfma":
        d = 8 if P.passes == 4 else 12
        if C.cls == "mfma":
            ab = cvr - C.srcc
            if pv & ab: n = max(n, d)
            if pv & C.srcc:
                if pv == C.srcc and P.passes == C.passes: pass
                else: n = max(n, 6 if P.passes == 4 else 10)
            elif pv & cvw and not (pv == cvw): n = max(n, d)
        else:
            if pv & (cvr | cvw): n = max(n, d)
        if cvalu and (P.srcc & cvw): n = max(n, 3 if P.passes == 4 else 7)
    if P.wide_store_data and (P.wide_store_data & cvw):
        n = max(n, 2 if cvalu else 1)
    return n

class K:
    def __init__(self):
        self.lines = []
        self.hist = []
        self.vmq = []
        self.dsq = []
        self.smem = False
        self.nops = 0
        self.ninstr = 0
    def raw(self, text):
        self.lines.append(text)
    def comment(self, text):
        self.lines.append("    ; " + text)
    def _advance(self, k):
        self.hist = [(i, a + k) for (i, a) in self.hist if a + k < 16]
    def e(self, text, tag=None):
        I = parse(text)
        req = 0
        for (P, age) in self.hist:
            nd = need(P, I)
            if nd > age: req = max(req, nd - age)
        if req:
            self._nop(req)
        self.lines.append("    " + text)
        self.ninstr += 1
        if I.mn == "s_nop":
            self._advance(int(text.split()[1]) + 1)
        else:
            self._advance(1)
        self.hist.append((I, 0))
        if I.cls == "vmem": self.vmq.append(tag if tag is not None else object())
        if I.cls == "ds": self.dsq.append(tag if tag is not None else object())
        if I.cls == "smem": self.smem = True
        return I
    def _nop(self, n):
        while n > 0:
            k = min(n, 16)
            self.lines.append(f"    s_nop {k-1}")
            self.nops += 1
            self._advance(k)
            n -= k
    def flush(self, n=8):
        worst = 0
        for (P, age) in self.hist:
            lim = 0
            if P.cls == "mfma": lim = 8 if P.passes == 4 else 12
            elif P.cls in ("valu", "trans"):
                lim = 5 if any(x[0] == "s" for x in P.w) else 2
            elif P.wide_store_data: lim = 2
            worst = max(worst, lim - age)
        if worst > 0: self._nop(worst)
        self.hist = []
    def label(self, name):
        self.flush()
        self.lines.append(name + ":")
    def branch(self, text):
        self.flush()
        self.e(text)
    def vwait(self, tag):
        if tag not in self.vmq: return
        idx = self.vmq.index(tag)
        n = len(self.vmq) - 1 - idx
        assert n <= 63, n
        self.e(f"s_waitcnt vmcnt({n})")
        self.vmq = self.vmq[idx + 1:]
    def vwait_all(self):
        self.e("s_waitcnt vmcnt(0)"); self.vmq = []
    def lwait(self, tag=None):
        if tag is None or self.smem:
            self.e("s_waitcnt lgkmcnt(0)"); self.dsq = []; self.smem = False; return
        if tag not in self.dsq: return
        idx = self.dsq.index(tag)
        n = len(self.dsq) - 1 - idx
        if n > 15:
            n = 15
            idx = len(self.dsq) - 1 - n
            assert False, "too many outstanding ds ops"
        self.e(f"s_waitcnt lgkmcnt({n})")
        self.dsq = self.dsq[idx + 1:]
    def text(self):
        return "\n".join(self.lines) + "\n"
```

```python
import sys
from asmgen import K
NAME = "recurrent_scan__gqa_block_cached__dense_activation_silu__decode"

YOFF = 0
GPOFF = 0x80000
MLOFF = 0x100000
STAMPOFF = 0x8000000
DBGOFF = 0x9000000
SENT = 0xFFFFFFFF
L_XN = 0
L_QP = 1024
L_QB = 5120
L_MX = 7168
L_SM = 7200
L_FP = 7232
L_WT = 7680
L_RG = 9728
L_RY = 10240
LDS_BYTES = 16384

DPPF = "row_mask:0xf bank_mask:0xf"

def gen(fname, stamps=False, dbg=False, barevery=4, nt=" nt", spin_limit=200000):
    k = K()
    e = k.e
    k.raw(open("cdna_kernels/" + NAME + ".s.ref").read().split("; Override")[0].rstrip())
    k.raw(f"; @launch grid=(256,1,1) block=(512,1,1) lds={LDS_BYTES}")
    k.raw('.amdgcn_target "amdgcn-amd-amdhsa--gfx950"')
    k.raw(".text"); k.raw(f".globl {NAME}_kernel"); k.raw(".p2align 8"); k.raw(f".type {NAME}_kernel,@function")
    k.raw(f"{NAME}_kernel:")
    vTID, vLANE, vOK, vOV, vOWQ, vOWO, vA, vB = 0, 1, 2, 3, 4, 5, 6, 7
    MASK = 8
    SEL = 12
    BQ = 16
    S = 32
    D0, D1 = 40, 44
    B0, B1 = 48, 52
    OA = 56
    T = 60
    W = 64
    RING = 128
    def ring(j): return RING + 4 * j
    def r4(a): return f"v[{a}:{a+3}]"
    def r2(a): return f"v[{a}:{a+1}]"
    sX, sK, sV, sWQ, sWO, sW1, sW2 = 4, 6, 8, 10, 12, 16, 18
    sOUT, sDBG, sWS = 20, 22, 24
    sWAVE, sH, sC, sPP = 26, 27, 3, 96
    SK, SV, SWQ, SWO, SW1, SW2, SX, SY, SGP, SML, SDBG, SGPG, SMLG = [28 + 4 * i for i in range(13)]
    sT0, sT1, sJ, sCONS = 80, 81, 82, 83
    sPC = 84
    sM = 86
    sTMP = 94
    sSTB = 97
    ST = 98
    nst = [0]
    STS = [6, 7, 8, 9, 10, 11, 12, 13, 14, 15, 16, 17, 18, 19]
    def stamp():
        if not stamps: return
        i = nst[0]; nst[0] += 1
        assert i < 14
        e(f"s_memrealtime s[{ST}:{ST+1}]")
        k.lwait()
        e(f"s_mov_b32 s{STS[i]}, s{ST}")
    def srd(S_, base, add_lo, size):
        if add_lo is None:
            e(f"s_mov_b32 s{S_}, s{base}"); e(f"s_mov_b32 s{S_+1}, s{base+1}")
        else:
            e(f"s_add_u32 s{S_}, s{base}, {add_lo}"); e(f"s_addc_u32 s{S_+1}, s{base+1}, 0")
        e(f"s_mov_b32 s{S_+2}, {size}"); e(f"s_mov_b32 s{S_+3}, 0x20000")
    def sr(S_): return f"s[{S_}:{S_+3}]"

    e("s_cmp_ge_u32 s2, 256")
    k.branch("s_cbranch_scc1 L_exit")
    e(f"s_load_dwordx16 s[4:19], s[0:1], 0")
    e(f"s_load_dwordx4 s[20:23], s[0:1], 64")
    e(f"s_load_dwordx2 s[24:25], s[0:1], 80")
    e(f"s_getpc_b64 s[{sPC}:{sPC+1}]")
    k.raw("L_pc:")
    e(f"v_and_b32 v{vLANE}, 63, v0")
    e(f"v_lshrrev_b32 v{vA}, 6, v0")
    e(f"v_readfirstlane_b32 s{sWAVE}, v{vA}")
    e(f"s_and_b32 s{sH}, s2, 31")
    e(f"s_lshr_b32 s{sC}, s2, 5")
    e(f"s_lshl_b32 s{sPP}, s{sH}, 3"); e(f"s_add_u32 s{sPP}, s{sPP}, s{sC}")
    e(f"s_and_b32 s{sT0}, s2, 7"); e(f"s_mul_i32 s{sJ}, s{sT0}, 22"); e(f"s_lshr_b32 s{sT0}, s2, 3"); e(f"s_add_u32 s{sJ}, s{sJ}, s{sT0}")
    e(f"s_cmp_lt_u32 s{sT0}, 22"); e(f"s_cselect_b32 s{sT1}, 1, 0")
    e(f"s_cmp_lt_u32 s{sJ}, 172"); e(f"s_cselect_b32 s{sT1}, s{sT1}, 0")
    e(f"s_mul_i32 s{sJ}, s{sJ}, s{sT1}")
    vG, vN = T, T + 1
    e(f"v_lshrrev_b32 v{vG}, 4, v{vLANE}")
    e(f"v_and_b32 v{vN}, 15, v{vLANE}")
    t0, t1 = D0, D0 + 1
    e(f"v_lshrrev_b32 v{t0}, 2, v{vN}"); e(f"v_lshlrev_b32 v{t0}, 8, v{t0}")
    e(f"v_lshl_add_u32 v{t0}, v{vG}, 6, v{t0}")
    e(f"v_and_b32 v{t1}, 3, v{vN}"); e(f"v_lshl_add_u32 v{t0}, v{t1}, 4, v{t0}")
    e(f"v_lshl_add_u32 v{vOK}, v{vA}, 12, v{t0}")
    e(f"v_lshlrev_b32 v{t0}, 4, v{vLANE}"); e(f"v_lshl_add_u32 v{vOV}, v{vA}, 12, v{t0}")
    vCc, vRho = D0 + 2, D0 + 3
    e(f"v_lshrrev_b32 v{vCc}, 1, v{vN}"); e(f"v_and_b32 v{vRho}, 1, v{vN}")
    e(f"v_lshrrev_b32 v{t0}, 1, v{vA}"); e(f"v_lshlrev_b32 v{t0}, 7, v{t0}")
    e(f"v_lshl_add_u32 v{t0}, v{vG}, 5, v{t0}"); e(f"v_add_u32 v{t0}, v{t0}, v{vRho}")
    e(f"v_lshlrev_b32 v{t0}, 13, v{t0}")
    e(f"v_and_b32 v{t1}, 1, v{vA}"); e(f"v_lshl_add_u32 v{t0}, v{t1}, 7, v{t0}")
    e(f"v_lshl_add_u32 v{vOWQ}, v{vCc}, 4, v{t0}")
    e(f"v_lshlrev_b32 v{t0}, 15, v{vG}"); e(f"v_lshl_add_u32 v{t0}, v{vRho}, 10, v{t0}")
    e(f"v_lshl_add_u32 v{t0}, v{vA}, 7, v{t0}"); e(f"v_lshl_add_u32 v{vOWO}, v{vCc}, 4, v{t0}")
    e(f"v_lshlrev_b32 v{t0}, 11, v{vG}"); e(f"v_lshl_add_u32 v{t0}, v{vRho}, 10, v{t0}")
    e(f"v_lshl_add_u32 v{t0}, v{vA}, 7, v{t0}"); e(f"v_lshl_add_u32 v{vB}, v{vCc}, 4, v{t0}")
    e(f"v_lshlrev_b32 v{t0}, 4, v{vRho}")
    e(f"v_mov_b32 v{t1}, 0xffff"); e(f"v_lshlrev_b32 v{t0}, v{t0}, v{t1}")
    for j in range(4):
        e(f"v_cmp_eq_u32 vcc, {j}, v{vCc}")
        e(f"v_cndmask_b32 v{MASK+j}, 0, v{t0}, vcc")
    e(f"v_lshrrev_b32 v{t0}, 3, v{vN}")
    e(f"v_mul_u32_u24 v{t0}, 0x0202, v{t0}"); e(f"v_add_u32 v{t0}, 0x0100, v{t0}")
    e(f"v_or_b32 v{t1}, 0x0c0c0000, v{t0}")
    e(f"v_lshlrev_b32 v{t0}, 16, v{t0}"); e(f"v_or_b32 v{t0}, 0x0c0c, v{t0}")
    e(f"v_cmp_eq_u32 vcc, 1, v{vRho}")
    e(f"v_cndmask_b32 v{t0}, v{t1}, v{t0}, vcc")
    e(f"v_bfe_u32 v{t1}, v{vN}, 1, 2")
    e(f"v_mov_b32 v{D1}, 0x0c0c0c0c")
    for j in range(4):
        e(f"v_cmp_eq_u32 vcc, {j}, v{t1}")
        e(f"v_cndmask_b32 v{SEL+j}, v{D1}, v{t0}, vcc")
    if stamps:
        e(f"s_lshl_b32 s{sSTB}, s2, 3"); e(f"s_add_u32 s{sSTB}, s{sSTB}, s{sWAVE}"); e(f"s_lshl_b32 s{sSTB}, s{sSTB}, 7")
        e(f"s_add_u32 s{sSTB}, s{sSTB}, {STAMPOFF:#x}")
    k.lwait()
    e(f"s_lshl_b32 s{sT0}, s{sH}, 21"); e(f"s_lshl_b32 s{sTMP}, s{sC}, 18"); e(f"s_add_u32 s{sT0}, s{sT0}, s{sTMP}")
    srd(SK, sK, f"s{sT0}", 262144)
    srd(SV, sV, f"s{sT0}", 262144)
    srd(SX, sX, None, 1024)
    e(f"s_lshl_b32 s{sT0}, s{sH}, 8")
    srd(SWQ, sWQ, f"s{sT0}", 4194304 - 31 * 256)
    e(f"s_lshl_b32 s{sT0}, s{sH}, 17")
    srd(SWO, sWO, f"s{sT0}", 131072)
    e(f"s_lshl_b32 s{sT0}, s{sJ}, 4")
    srd(SW1, sW1, f"s{sT0}", 0); e(f"s_mul_i32 s{SW1+2}, s{sT1}, {512*2752 - 171*16}")
    e(f"s_lshl_b32 s{sT0}, s{sJ}, 13")
    srd(SW2, sW2, f"s{sT0}", 0); e(f"s_mul_i32 s{SW2+2}, s{sT1}, 8192")
    e(f"s_lshl_b32 s{sT0}, s{sPP}, 11")
    srd(SY, sWS, f"s{sT0}", 2048)
    e(f"s_lshl_b32 s{sT0}, s{sJ}, 11"); e(f"s_add_u32 s{sT0}, s{sT0}, {GPOFF:#x}")
    srd(SGP, sWS, f"s{sT0}", 0); e(f"s_mul_i32 s{SGP+2}, s{sT1}, 2048")
    e(f"s_lshl_b32 s{sT0}, s{sPP}, 3"); e(f"s_add_u32 s{sT0}, s{sT0}, {MLOFF:#x}")
    srd(SML, sWS, f"s{sT0}", 8)
    srd(SDBG, sDBG, None, 4)
    e(f"s_cmp_ge_u32 s2, 224"); e(f"s_cselect_b32 s{sCONS}, 1, 0")
    e(f"s_sub_u32 s{sT0}, s2, 224"); e(f"s_mul_i32 s{sT0}, s{sT0}, s{sCONS}"); e(f"s_lshl_b32 s{sT0}, s{sT0}, 6")
    e(f"s_add_u32 s{sTMP}, s{sT0}, {GPOFF:#x}")
    srd(SGPG, sWS, f"s{sTMP}", 0); e(f"s_mul_i32 s{SGPG+2}, s{sCONS}, {171*2048+64}")
    srd(SMLG, sWS, f"{MLOFF:#x}", 0); e(f"s_mul_i32 s{SMLG+2}, s{sCONS}, 2048")
    if stamps:
        for q in STS: e(f"s_mov_b32 s{q}, 0")
    stamp()

    L = []
    for i in range(16): L += [("WQ", i), ("K", i)]
    for i in range(16): L += [("K", 16 + i), ("WO", i)]
    for i in range(32): L += [("V", i)]
    ptr = [0]
    done = set()
    def cons(item):
        kind, i = item
        if kind == "K" and i == 30: return "W1used"
        if kind == "K" and i == 31: return "W2used"
        if kind == "WO": return f"q{i}"
        if kind == "V": return f"qk{i//4}"
        return None
    def issue(n=1):
        for _ in range(n):
            if ptr[0] >= len(L): return
            item = L[ptr[0]]
            c = cons(item)
            assert c is None or c in done, (item, c)
            kind, i = item
            if barevery and ptr[0] % barevery == 0 and ptr[0] > 0: e("s_barrier")
            if kind in "KV":
                tile, t = i // 4, i % 4
                S_ = SK if kind == "K" else SV
                vo = vOK if kind == "K" else vOV
                e(f"s_mov_b32 s{sT0}, {tile*32768}")
                e(f"buffer_load_dwordx4 {r4(ring(i))}, v{vo}, {sr(S_)}, s{sT0} offen offset:{t*1024}{nt}", f"{kind}{i}")
            elif kind == "WQ":
                e(f"s_mov_b32 s{sT0}, {i*16384}")
                e(f"buffer_load_dwordx4 {r4(W+4*i)}, v{vOWQ}, {sr(SWQ)}, s{sT0} offen{nt}", f"WQ{i}")
            else:
                e(f"s_mov_b32 s{sT0}, {(i//2)*4096}")
                e(f"buffer_load_dwordx4 {r4(W+4*i)}, v{vOWO}, {sr(SWO)}, s{sT0} offen offset:{(i%2)*2048}{nt}", f"WO{i}")
            ptr[0] += 1
    def can_issue():
        if ptr[0] >= len(L): return False
        c = cons(L[ptr[0]])
        return c is None or c in done
    def issue_upto(n):
        while n > 0 and can_issue():
            issue(1); n -= 1

    e(f"v_lshlrev_b32 v{vA}, 4, v{vLANE}")
    e(f"buffer_load_dwordx4 {r4(T)}, v{vA}, {sr(SX)}, 0 offen", "X")
    W1R, W2R = ring(30), ring(31)
    e(f"v_mul_u32_u24 v{vA}, 2752, v0")
    e(f"buffer_load_dwordx4 {r4(W1R)}, v{vA}, {sr(SW1)}, 0 offen{nt}", "W1")
    e(f"buffer_load_dwordx4 {r4(W2R)}, v{vB}, {sr(SW2)}, 0 offen{nt}", "W2")
    e(f"v_lshlrev_b32 v{vA}, 2, v0"); e(f"v_mov_b32 v{vB}, -1")
    e(f"buffer_store_dword v{vB}, v{vA}, {sr(SY)}, 0 offen sc1", "CLR0")
    e(f"buffer_store_dword v{vB}, v{vA}, {sr(SGP)}, 0 offen sc1", "CLR1")
    e(f"buffer_store_dword v{vB}, v{vA}, {sr(SML)}, 0 offen sc1", "CLR2")
    SCODE = SMLG + 4
    SCODE = 84
    e(f"s_sub_u32 s{sPC}, s{sPC}, L_pc-{NAME}_kernel"); e(f"s_subb_u32 s{sPC+1}, s{sPC+1}, 0")
    e(f"s_mov_b32 s{SCODE+2}, L_code_end-{NAME}_kernel"); e(f"s_mov_b32 s{SCODE+3}, 0x20000")
    e(f"v_lshrrev_b32 v{vB}, 6, v0")
    e(f"v_lshlrev_b32 v{vA}, 4, v0")
    e(f"v_lshl_add_u32 v{vA}, v{vB}, 10, v{vA}")
    e(f"buffer_load_dwordx4 {r4(ring(29))}, v{vA}, {sr(SCODE)}, 0 offen", "CODE0")
    e(f"buffer_load_dwordx4 {r4(ring(29))}, v{vA}, {sr(SCODE)}, 0 offen offset:1024", "CODE1")
    for t in range(4):
        m = 0x000F000F << (4 * t)
        e(f"s_mov_b32 s{sM+2*t}, {m:#x}"); e(f"s_mov_b32 s{sM+2*t+1}, {m:#x}")
    issue(8)
    stamp()

    k.vwait("X")
    XF = S
    for j in range(4):
        e(f"v_lshlrev_b32 v{XF+2*j}, 16, v{T+j}")
        e(f"v_and_b32 v{XF+2*j+1}, 0xffff0000, v{T+j}")
    def wave_reduce(v, op, tmp_s):
        for sh in (8, 4, 2, 1):
            e(f"{op}_dpp v{v}, v{v}, v{v} row_ror:{sh} {DPPF}")
        e(f"{op}_dpp v{v}, v{v}, v{v} row_bcast:15 row_mask:0xa bank_mask:0xf")
        e(f"{op}_dpp v{v}, v{v}, v{v} row_bcast:31 row_mask:0xc bank_mask:0xf")
        e(f"v_readlane_b32 s{tmp_s}, v{v}, 63")
    a = D0
    e(f"v_add_f32 v{a}, v{XF}, v{XF+1}"); e(f"v_add_f32 v{a+1}, v{XF+2}, v{XF+3}")
    e(f"v_add_f32 v{a+2}, v{XF+4}, v{XF+5}"); e(f"v_add_f32 v{a+3}, v{XF+6}, v{XF+7}")
    e(f"v_add_f32 v{a}, v{a}, v{a+1}"); e(f"v_add_f32 v{a+2}, v{a+2}, v{a+3}"); e(f"v_add_f32 v{a}, v{a}, v{a+2}")
    wave_reduce(a, "v_add_f32", sT1)
    vMean = D1
    e(f"v_mov_b32 v{vMean}, s{sT1}"); e(f"v_mul_f32 v{vMean}, 0x3b000000, v{vMean}")
    e(f"v_sub_f32 v{a+1}, v{XF}, v{vMean}"); e(f"v_mul_f32 v{a}, v{a+1}, v{a+1}")
    for j in range(1, 8):
        e(f"v_sub_f32 v{a+1}, v{XF+j}, v{vMean}"); e(f"v_fmac_f32 v{a}, v{a+1}, v{a+1}")
    wave_reduce(a, "v_add_f32", sT1)
    def rbf(dst, src):
        e(f"v_cvt_pk_bf16_f32 v{dst}, v{src}, v{src}"); e(f"v_and_b32 v{dst}, 0xffff0000, v{dst}")
    vVar, vR, vRi = D1 + 1, D1 + 2, D1 + 3
    e(f"v_mov_b32 v{vVar}, s{sT1}"); e(f"v_mul_f32 v{vVar}, 0x3b000000, v{vVar}")
    rbf(vVar, vVar)
    e(f"v_add_f32 v{vVar}, 0x3727c5ac, v{vVar}")
    rbf(vVar, vVar)
    e(f"v_sqrt_f32 v{vR}, v{vVar}")
    rbf(vR, vR)
    e(f"v_rcp_f32 v{vRi}, v{vR}")
    rbf(vMean, vMean)
    for j in range(4):
        e(f"v_sub_f32 v{XF+2*j}, v{XF+2*j}, v{vMean}"); e(f"v_sub_f32 v{XF+2*j+1}, v{XF+2*j+1}, v{vMean}")
        e(f"v_cvt_pk_bf16_f32 v{a}, v{XF+2*j}, v{XF+2*j+1}")
        e(f"v_lshlrev_b32 v{XF+2*j}, 16, v{a}"); e(f"v_and_b32 v{XF+2*j+1}, 0xffff0000, v{a}")
    for j in range(8):
        q0, er = B0, B0 + 1
        e(f"v_mul_f32 v{q0}, v{XF+j}, v{vRi}")
        e(f"v_fma_f32 v{er}, -v{q0}, v{vR}, v{XF+j}")
        e(f"v_fma_f32 v{XF+j}, v{er}, v{vRi}, v{q0}")
    for j in range(4):
        e(f"v_cvt_pk_bf16_f32 v{T+j}, v{XF+2*j}, v{XF+2*j+1}")
    e(f"v_lshlrev_b32 v{vA}, 4, v{vLANE}")
    e(f"ds_write_b128 v{vA}, {r4(T)} offset:{L_XN}")
    issue(4)
    e(f"v_lshrrev_b32 v{vA}, 4, v{vLANE}"); e(f"v_lshlrev_b32 v{vA}, 6, v{vA}")
    e(f"s_lshr_b32 s{sT1}, s{sWAVE}, 1"); e(f"s_lshl_b32 s{sT1}, s{sT1}, 8")
    e(f"v_add_u32 v{vA}, s{sT1}, v{vA}")
    k.lwait()
    for u in range(4):
        e(f"ds_read_b128 {r4(BQ+4*u)}, v{vA} offset:{L_XN+16*u}")
    e(f"v_lshlrev_b32 v{vB}, 1, v0")
    e(f"ds_read_u16 v{T}, v{vB} offset:{L_XN}")
    k.vwait("W1")
    k.lwait()
    e(f"v_lshlrev_b32 v{T}, 16, v{T}")
    F = S
    for j in range(4):
        e(f"v_lshlrev_b32 v{F+2*j}, 16, v{W1R+j}"); e(f"v_and_b32 v{F+2*j+1}, 0xffff0000, v{W1R+j}")
    done.add("W1used")
    for j in range(8): e(f"v_mul_f32 v{F+j}, v{F+j}, v{T}")
    for i in range(4):
        e(f"v_permlane32_swap_b32 v{F+i}, v{F+i+4}")
    for i in range(4):
        e(f"v_add_f32 v{F+i}, v{F+i}, v{F+i+4}")
    e(f"v_permlane16_swap_b32 v{F}, v{F+1}"); e(f"v_permlane16_swap_b32 v{F+2}, v{F+3}")
    e(f"v_add_f32 v{F}, v{F}, v{F+1}"); e(f"v_add_f32 v{F+2}, v{F+2}, v{F+3}")
    for sh in (8, 4, 2, 1):
        e(f"v_add_f32_dpp v{F}, v{F}, v{F} row_ror:{sh} {DPPF}")
        e(f"v_add_f32_dpp v{F+2}, v{F+2}, v{F+2} row_ror:{sh} {DPPF}")
    e(f"v_lshrrev_b32 v{vA}, 4, v{vLANE}")
    e(f"v_and_b32 v{vB}, 1, v{vA}"); e(f"v_lshrrev_b32 v{vA}, 1, v{vA}")
    e(f"v_lshl_add_u32 v{vA}, v{vA}, 2, v{vB}")
    e(f"v_lshlrev_b32 v{vA}, 5, v{vA}"); e(f"s_lshl_b32 s{sT1}, s{sWAVE}, 2"); e(f"v_add_u32 v{vA}, s{sT1}, v{vA}")
    e(f"ds_write2_b32 v{vA}, v{F}, v{F+2} offset0:{L_FP//4} offset1:{L_FP//4+16}") if L_FP // 4 + 16 < 256 else None
    if L_FP // 4 + 16 >= 256:
        e(f"ds_write_b32 v{vA}, v{F} offset:{L_FP}"); e(f"ds_write_b32 v{vA}, v{F+2} offset:{L_FP+64}")
    stamp()
    def gemv_step(t, Preg, acc, first, Bt, tagwait):
        k.vwait(tagwait)
        for j in range(4):
            e(f"v_perm_b32 v{Bt+j}, v{Preg}, v{Preg}, v{SEL+j}")
        e(f"v_mfma_f32_16x16x32_bf16 {r4(acc)}, {r4(W+4*t)}, {r4(Bt)}, {'0' if first else r4(acc)}")
    for t in range(16):
        gemv_step(t, BQ + t, OA, t == 0, B0 if t % 2 == 0 else B1, f"WQ{t}")
        done.add(f"q{t}")
        issue_upto(2)
    def gemv_fin(acc, ya, yb):
        e(f"v_add_f32_dpp v{ya}, v{acc+1}, v{acc} row_ror:8 {DPPF}")
        e(f"v_add_f32_dpp v{yb}, v{acc+3}, v{acc+2} row_ror:8 {DPPF}")
    gemv_fin(OA, T, T + 1)
    e(f"v_lshrrev_b32 v{vA}, 4, v{vLANE}"); e(f"v_lshlrev_b32 v{vA}, 6, v{vA}")
    e(f"v_and_b32 v{vB}, 15, v{vLANE}"); e(f"v_lshl_add_u32 v{vA}, v{vB}, 2, v{vA}")
    e(f"s_lshr_b32 s{sT1}, s{sWAVE}, 1"); e(f"s_lshl_b32 s{sT1}, s{sT1}, 9")
    e(f"s_and_b32 s{sTMP}, s{sWAVE}, 1"); e(f"s_lshl_b32 s{sTMP}, s{sTMP}, 8"); e(f"s_add_u32 s{sT1}, s{sT1}, s{sTMP}")
    e(f"v_add_u32 v{vA}, s{sT1}, v{vA}")
    e("s_mov_b32 exec_lo, 0x00ff00ff"); e("s_mov_b32 exec_hi, 0x00ff00ff")
    e(f"ds_write_b32 v{vA}, v{T} offset:{L_QP}"); e(f"ds_write_b32 v{vA}, v{T+1} offset:{L_QP+32}")
    e("s_mov_b64 exec, -1")
    k.lwait()
    e("s_barrier")
    stamp()
    e(f"v_lshlrev_b32 v{vA}, 2, v0"); e(f"v_mov_b32 v{vB}, 1")
    e(f"buffer_atomic_add v{vB}, v{vA}, {sr(SDBG)}, 0 offen sc1", "ATOM")
    issue_upto(4)
    e(f"v_lshlrev_b32 v{vA}, 3, v{vLANE}")
    for rq in range(4):
        e(f"ds_read_b64 {r2(S+2*rq)}, v{vA} offset:{L_QP+512*rq}")
    e(f"v_lshrrev_b32 v{vB}, 4, v{vLANE}"); e(f"v_lshlrev_b32 v{vB}, 6, v{vB}")
    HF = BQ
    for u in range(4):
        e(f"ds_read_b128 {r4(HF+4*u)}, v{vB} offset:{L_FP+16*u}")
    k.lwait()
    e(f"v_add_f32 v{S}, v{S}, v{S+2}"); e(f"v_add_f32 v{S+1}, v{S+1}, v{S+3}")
    e(f"v_add_f32 v{S+4}, v{S+4}, v{S+6}"); e(f"v_add_f32 v{S+5}, v{S+5}, v{S+7}")
    e(f"v_add_f32 v{S}, v{S}, v{S+4}"); e(f"v_add_f32 v{S+1}, v{S+1}, v{S+5}")
    e(f"v_cvt_pk_bf16_f32 v{S}, v{S}, v{S+1}")
    e(f"s_lshl_b32 s{sT1}, s{sWAVE}, 8")
    e(f"v_lshlrev_b32 v{vA}, 2, v{vLANE}"); e(f"v_add_u32 v{vA}, s{sT1}, v{vA}")
    e(f"ds_write_b32 v{vA}, v{S} offset:{L_QB}")
    if dbg:
        pass
    for base in (HF, HF + 8):
        e(f"v_add_f32 v{base}, v{base}, v{base+1}"); e(f"v_add_f32 v{base+2}, v{base+2}, v{base+3}")
        e(f"v_add_f32 v{base+4}, v{base+4}, v{base+5}"); e(f"v_add_f32 v{base+6}, v{base+6}, v{base+7}")
        e(f"v_add_f32 v{base}, v{base}, v{base+2}"); e(f"v_add_f32 v{base+4}, v{base+4}, v{base+6}")
        e(f"v_add_f32 v{base}, v{base}, v{base+4}")
    def silu_bf(v, t1_, t2_):
        rbf(v, v)
        e(f"v_mul_f32 v{t1_}, 0xbfb8aa3b, v{v}")
        e(f"v_exp_f32 v{t1_}, v{t1_}")
        e(f"v_add_f32 v{t1_}, 1.0, v{t1_}")
        e(f"v_rcp_f32 v{t2_}, v{t1_}")
        e(f"v_mul_f32 v{v}, v{v}, v{t2_}")
    silu_bf(HF, HF + 4, HF + 5)
    silu_bf(HF + 8, HF + 12, HF + 13)
    e(f"v_cvt_pk_bf16_f32 v{HF}, v{HF}, v{HF+8}")
    k.vwait("W2")
    for j in range(4): e(f"v_perm_b32 v{B0+j}, v{HF}, v{HF}, v{SEL+j}")
    e(f"v_mfma_f32_16x16x32_bf16 {r4(D0)}, {r4(W2R)}, {r4(B0)}, 0")
    done.add("W2used")
    e(f"v_lshrrev_b32 v{vA}, 4, v{vLANE}"); e(f"v_lshlrev_b32 v{vA}, 6, v{vA}")
    e(f"v_and_b32 v{vB}, 3, v{vLANE}"); e(f"v_lshl_add_u32 v{vA}, v{vB}, 4, v{vA}"); e(f"v_add_u32 v{vA}, s{sT1}, v{vA}")
    k.lwait()
    e(f"ds_read_b128 {r4(T)}, v{vA} offset:{L_QB}")
    vOY = vOWQ
    e(f"v_lshrrev_b32 v{vA}, 4, v{vLANE}"); e(f"v_and_b32 v{vB}, 15, v{vLANE}")
    e(f"v_lshl_add_u32 v{vA}, v{vA}, 3, v{vB}"); e(f"v_lshlrev_b32 v{vA}, 3, v{vA}")
    e(f"v_add_u32 v{vA}, s{sT1}, v{vA}")
    e(f"v_cmp_gt_u32 vcc, 8, v{vB}"); e(f"v_mov_b32 v{vB}, 0x10000"); e(f"v_cndmask_b32 v{vOY}, v{vB}, v{vA}, vcc")
    gemv_fin(D0, S, S + 1)
    e(f"v_min_u32 v{S}, -2, v{S}"); e(f"v_min_u32 v{S+1}, -2, v{S+1}")
    e(f"buffer_store_dwordx2 {r2(S)}, v{vOY}, {sr(SGP)}, 0 offen sc1", "GPST")
    k.lwait()
    for t in range(4):
        for j in range(4):
            e(f"v_cndmask_b32 v{BQ+4*t+j}, 0, v{T+j}, s[{sM+2*t}:{sM+2*t+1}]")
    stamp()
    def qk_mfma(i, D):
        k.vwait(f"K{4*i+3}")
        for t in range(4):
            e(f"v_mfma_f32_16x16x32_bf16 {r4(D)}, {r4(ring(4*i+t))}, {r4(BQ+4*t)}, {'0' if t == 0 else r4(D)}")
        done.add(f"qk{i}")
    def qk_extract(i, D):
        e(f"v_mov_b32_dpp v{S+i}, v{D} quad_perm:[0,0,0,0] {DPPF}")
        for j in range(1, 4):
            e(f"v_add_f32_dpp v{S+i}, v{D+j}, v{S+i} quad_perm:[{j},{j},{j},{j}] {DPPF}")
    for i in range(8):
        qk_mfma(i, D0 if i % 2 == 0 else D1)
        issue_upto(8 if i < 4 else 6)
        if i > 0: qk_extract(i - 1, D1 if i % 2 == 0 else D0)
    qk_extract(7, D1)
    for i in range(0, 8, 2):
        e(f"v_cvt_pk_bf16_f32 v{T}, v{S+i}, v{S+i+1}")
        e(f"v_lshlrev_b32 v{S+i}, 16, v{T}"); e(f"v_and_b32 v{S+i+1}, 0xffff0000, v{T}")
        e(f"v_mul_f32 v{S+i}, 0x3db504f3, v{S+i}"); e(f"v_mul_f32 v{S+i+1}, 0x3db504f3, v{S+i+1}")
        e(f"v_cvt_pk_bf16_f32 v{T}, v{S+i}, v{S+i+1}")
        e(f"v_lshlrev_b32 v{S+i}, 16, v{T}"); e(f"v_and_b32 v{S+i+1}, 0xffff0000, v{T}")
    e(f"v_max3_f32 v{T}, v{S}, v{S+1}, v{S+2}"); e(f"v_max3_f32 v{T}, v{T}, v{S+3}, v{S+4}")
    e(f"v_max3_f32 v{T}, v{T}, v{S+5}, v{S+6}"); e(f"v_max_f32 v{T}, v{T}, v{S+7}")
    for sh in (8, 4):
        e(f"v_max_f32_dpp v{T}, v{T}, v{T} row_ror:{sh} {DPPF}")
    e(f"v_max_f32_dpp v{T}, v{T}, v{T} row_bcast:15 row_mask:0xa bank_mask:0xf")
    e(f"v_max_f32_dpp v{T}, v{T}, v{T} row_bcast:31 row_mask:0xc bank_mask:0xf")
    e(f"v_readlane_b32 s{sT1}, v{T}, 63")
    e(f"s_lshl_b32 s{sTMP}, s{sWAVE}, 2")
    e(f"v_mov_b32 v{vA}, s{sTMP}"); e(f"v_mov_b32 v{T}, s{sT1}")
    e(f"ds_write_b32 v{vA}, v{T} offset:{L_MX}")
    k.lwait()
    e("s_barrier")
    stamp()
    e(f"v_mov_b32 v{vB}, 0")
    e(f"ds_read_b128 {r4(D0)}, v{vB} offset:{L_MX}"); e(f"ds_read_b128 {r4(D1)}, v{vB} offset:{L_MX+16}")
    e(f"v_mov_b32 v{vB+0}, 0")
    e(f"buffer_load_dword v{T+3}, v{vB}, {sr(SDBG)}, 0 offen sc1", "CNT")
    issue_upto(8)
    k.lwait()
    vM = T + 2
    e(f"v_max3_f32 v{vM}, v{D0}, v{D0+1}, v{D0+2}"); e(f"v_max3_f32 v{vM}, v{vM}, v{D0+3}, v{D1}")
    e(f"v_max3_f32 v{vM}, v{vM}, v{D1+1}, v{D1+2}"); e(f"v_max_f32 v{vM}, v{vM}, v{D1+3}")
    for i in range(8):
        e(f"v_sub_f32 v{S+i}, v{S+i}, v{vM}"); e(f"v_mul_f32 v{S+i}, 0x3fb8aa3b, v{S+i}")
        e(f"v_exp_f32 v{S+i}, v{S+i}")
    e(f"v_add_f32 v{T}, v{S}, v{S+1}"); e(f"v_add_f32 v{T+1}, v{S+2}, v{S+3}")
    e(f"v_add_f32 v{D0}, v{S+4}, v{S+5}"); e(f"v_add_f32 v{D0+1}, v{S+6}, v{S+7}")
    e(f"v_add_f32 v{T}, v{T}, v{T+1}"); e(f"v_add_f32 v{D0}, v{D0}, v{D0+1}"); e(f"v_add_f32 v{T}, v{T}, v{D0}")
    for sh in (8, 4):
        e(f"v_add_f32_dpp v{T}, v{T}, v{T} row_ror:{sh} {DPPF}")
    e(f"v_add_f32_dpp v{T}, v{T}, v{T} row_bcast:15 row_mask:0xa bank_mask:0xf")
    e(f"v_add_f32_dpp v{T}, v{T}, v{T} row_bcast:31 row_mask:0xc bank_mask:0xf")
    e(f"v_readlane_b32 s{sT1}, v{T}, 63")
    e(f"v_mov_b32 v{T}, s{sT1}")
    e(f"ds_write_b32 v{vA}, v{T} offset:{L_SM}")
    for i in range(8):
        e(f"v_cvt_pk_bf16_f32 v{S+i}, v{S+i}, v{S+i}")
    def pv(i):
        for t in range(4):
            Bt = B0 if t % 2 == 0 else B1
            for j in range(4):
                e(f"v_and_b32_dpp v{Bt+j}, v{S+i}, v{MASK+j} row_newbcast:{4*t} {DPPF}")
            k.vwait(f"V{4*i+t}")
            first = (i == 0 and t == 0)
            e(f"v_mfma_f32_16x16x32_bf16 {r4(OA)}, {r4(ring(4*i+t))}, {r4(Bt)}, {'0' if first else r4(OA)}")
    for i in range(8):
        pv(i)
        if i == 0:
            k.lwait(); e("s_barrier")
            e(f"v_mov_b32 v{vB}, 0")
            e(f"ds_read_b128 {r4(D0)}, v{vB} offset:{L_SM}"); e(f"ds_read_b128 {r4(D1)}, v{vB} offset:{L_SM+16}")
            k.lwait()
            e(f"v_add_f32 v{D0}, v{D0}, v{D0+1}"); e(f"v_add_f32 v{D0+2}, v{D0+2}, v{D0+3}")
            e(f"v_add_f32 v{D1}, v{D1}, v{D1+1}"); e(f"v_add_f32 v{D1+2}, v{D1+2}, v{D1+3}")
            e(f"v_add_f32 v{D0}, v{D0}, v{D0+2}"); e(f"v_add_f32 v{D1}, v{D1}, v{D1+2}"); e(f"v_add_f32 v{T+1}, v{D0}, v{D1}")
            e(f"v_min_u32 v{T}, -2, v{vM}"); e(f"v_min_u32 v{T+1}, -2, v{T+1}")
            e(f"v_lshlrev_b32 v{vB}, 3, v0")
            e(f"buffer_store_dwordx2 {r2(T)}, v{vB}, {sr(SML)}, 0 offen sc1", "MLST")
        if i == 1:
            k.vwait("CNT")
            e(f"v_readfirstlane_b32 s{sT1}, v{T+3}")
            e(f"s_cmp_eq_u32 s{sCONS}, 0"); k.branch("s_cbranch_scc1 L_cnt_ok")
            e(f"s_mov_b32 s{sTMP}, 0")
            k.label("L_cnt_loop")
            e(f"s_cmp_eq_u32 s{sT1}, 256"); k.branch("s_cbranch_scc1 L_cnt_ok")
            e(f"s_add_u32 s{sTMP}, s{sTMP}, 1"); e(f"s_cmp_gt_u32 s{sTMP}, {spin_limit}"); k.branch("s_cbranch_scc1 L_cnt_ok")
            e("s_sleep 2")
            e(f"v_mov_b32 v{vB}, 0")
            e(f"buffer_load_dword v{T+3}, v{vB}, {sr(SDBG)}, 0 offen sc1"); k.vmq.pop()
            e("s_waitcnt vmcnt(0)")
            e(f"v_readfirstlane_b32 s{sT1}, v{T+3}")
            k.branch("s_branch L_cnt_loop")
            k.label("L_cnt_ok")
        issue_upto(4)
        if ptr[0] >= len(L) and "GATH" not in done:
            done.add("GATH")
            GA = W
    stamp()
    k.L = L
    e(f"v_lshrrev_b32 v{vA}, 4, v{vLANE}"); e(f"v_lshlrev_b32 v{vA}, 7, v{vA}")
    e(f"v_and_b32 v{vB}, 15, v{vLANE}"); e(f"v_lshl_add_u32 v{vA}, v{vB}, 2, v{vA}")
    e(f"s_lshl_b32 s{sT1}, s{sWAVE}, 9"); e(f"v_add_u32 v{vA}, s{sT1}, v{vA}")
    e("s_mov_b32 exec_lo, 0x00ff00ff"); e("s_mov_b32 exec_hi, 0x00ff00ff")
    for j in range(4):
        e(f"ds_write_b32 v{vA}, v{OA+j} offset:{L_QP+32*j}")
    e("s_mov_b64 exec, -1")
    G0, G1, MLR = ring(0), ring(1), ring(2)
    e(f"v_lshrrev_b32 v{vB}, 2, v0"); e(f"v_lshlrev_b32 v{vB}, 11, v{vB}")
    e(f"v_and_b32 v{T}, 3, v0"); e(f"v_lshl_add_u32 v{vB}, v{T}, 4, v{vB}")
    vGO = vOK
    e(f"v_mov_b32 v{vGO}, v{vB}")
    e(f"s_mov_b32 s{sT0}, {128*2048}")
    e(f"buffer_load_dwordx4 {r4(G0)}, v{vGO}, {sr(SGPG)}, 0 offen sc1", "G0")
    e(f"buffer_load_dwordx4 {r4(G1)}, v{vGO}, {sr(SGPG)}, s{sT0} offen sc1", "G1")
    e(f"v_lshlrev_b32 v{vB}, 3, v0")
    e(f"buffer_load_dwordx2 {r2(MLR)}, v{vB}, {sr(SMLG)}, 0 offen sc1", "MLG")
    k.lwait()
    e("s_barrier")
    e(f"v_lshlrev_b32 v{vA}, 3, v{vLANE}")
    for w_ in range(8):
        e(f"ds_read_b64 {r2(BQ+2*w_)}, v{vA} offset:{L_QP+512*w_}", f"o{w_}")
    k.lwait("o3")
    e(f"v_pk_add_f32 {r2(BQ)}, {r2(BQ)}, {r2(BQ+2)}"); e(f"v_pk_add_f32 {r2(BQ+4)}, {r2(BQ+4)}, {r2(BQ+6)}")
    k.lwait("o7")
    e(f"v_pk_add_f32 {r2(BQ+8)}, {r2(BQ+8)}, {r2(BQ+10)}"); e(f"v_pk_add_f32 {r2(BQ+12)}, {r2(BQ+12)}, {r2(BQ+14)}")
    e(f"v_pk_add_f32 {r2(BQ)}, {r2(BQ)}, {r2(BQ+4)}"); e(f"v_pk_add_f32 {r2(BQ+8)}, {r2(BQ+8)}, {r2(BQ+12)}")
    e(f"v_pk_add_f32 {r2(BQ)}, {r2(BQ)}, {r2(BQ+8)}")
    e(f"v_cvt_pk_bf16_f32 v{T}, v{BQ}, v{BQ+1}")
    k.vwait("WO15")
    for t in range(16):
        P = S + (t % 4)
        Bt = B0 if t % 2 == 0 else B1
        e(f"v_mov_b32_dpp v{P}, v{T} row_newbcast:{t} {DPPF}")
        for j in range(4):
            e(f"v_perm_b32 v{Bt+j}, v{P}, v{P}, v{SEL+j}")
        e(f"v_mfma_f32_16x16x32_bf16 {r4(OA)}, {r4(W+4*t)}, {r4(Bt)}, {'0' if t == 0 else r4(OA)}")
    gemv_fin(OA, T, T + 1)
    e(f"v_min_u32 v{T}, -2, v{T}"); e(f"v_min_u32 v{T+1}, -2, v{T+1}")
    e(f"buffer_store_dwordx2 {r2(T)}, v{vOY}, {sr(SY)}, 0 offen sc1", "YST")
    stamp()
    e(f"s_cmp_eq_u32 s{sCONS}, 0")
    k.branch("s_cbranch_scc1 L_end")
    def poll(regs_list, reload_fn, name):
        e(f"s_mov_b32 s{sTMP}, 0")
        k.label(f"L_{name}_loop")
        first = True
        for r in regs_list:
            if first:
                e(f"v_cmp_eq_u32 vcc, -1, v{r}"); first = False
            else:
                e(f"v_cmp_eq_u32 s[{sM}:{sM+1}], -1, v{r}"); e(f"s_or_b64 vcc, vcc, s[{sM}:{sM+1}]")
        e("s_cmp_eq_u64 vcc, 0")
        k.branch(f"s_cbranch_scc1 L_{name}_ok")
        e(f"s_add_u32 s{sTMP}, s{sTMP}, 1"); e(f"s_cmp_gt_u32 s{sTMP}, {spin_limit}"); k.branch(f"s_cbranch_scc1 L_{name}_ok")
        e("s_mov_b64 exec, vcc")
        reload_fn()
        e("s_mov_b64 exec, -1")
        e("s_waitcnt vmcnt(0)"); k.vmq = []
        k.branch(f"s_branch L_{name}_loop")
        k.label(f"L_{name}_ok")
    Y0, Y1 = ring(3), ring(4)
    SYG = SK
    e(f"s_sub_u32 s{sT1}, s2, 224"); e(f"s_lshl_b32 s{sT1}, s{sT1}, 6")
    srd(SYG, sWS, f"s{sT1}", 255 * 2048 + 64)
    e(f"s_mov_b32 s{sT0}, {128*2048}")
    def ld_y():
        e(f"buffer_load_dwordx4 {r4(Y0)}, v{vGO}, {sr(SYG)}, 0 offen sc1", "Y0")
        e(f"buffer_load_dwordx4 {r4(Y1)}, v{vGO}, {sr(SYG)}, s{sT0} offen sc1", "Y1")
    ld_y()
    vCol = vOV
    e(f"v_and_b32 v{vA}, 3, v{vLANE}"); e(f"v_lshlrev_b32 v{vA}, 1, v{vA}")
    e(f"v_bfe_u32 v{vB}, v{vLANE}, 2, 1"); e(f"v_lshl_add_u32 v{vA}, v{vB}, 3, v{vA}")
    e(f"v_bfe_u32 v{vB}, v{vLANE}, 3, 1"); e(f"v_add_u32 v{vA}, v{vA}, v{vB}")
    e(f"s_lshr_b32 s{sT1}, s{sT1}, 2")
    e(f"v_add_u32 v{vA}, s{sT1}, v{vA}"); e(f"v_lshlrev_b32 v{vCol}, 1, v{vA}")
    XV = ring(5)
    e(f"buffer_load_ushort v{XV}, v{vCol}, {sr(SX)}, 0 offen", "XV")
    k.vwait("MLG")
    def ld_g():
        e(f"buffer_load_dwordx4 {r4(G0)}, v{vGO}, {sr(SGPG)}, 0 offen sc1"); e(f"buffer_load_dwordx4 {r4(G1)}, v{vGO}, {sr(SGPG)}, s{sT0} offen sc1")
    saved = list(k.vmq)
    poll([G0 + j for j in range(4)] + [G1 + j for j in range(4)], ld_g, "g")
    k.vmq = saved
    def ld_ml():
        e(f"v_lshlrev_b32 v{vB}, 3, v0")
        e(f"buffer_load_dwordx2 {r2(MLR)}, v{vB}, {sr(SMLG)}, 0 offen sc1")
    saved = list(k.vmq)
    poll([MLR, MLR + 1], ld_ml, "ml")
    k.vmq = saved
    def reduce16(acc, ldsoff):
        e(f"v_permlane32_swap_b32 v{acc}, v{acc+2}"); e(f"v_permlane32_swap_b32 v{acc+1}, v{acc+3}")
        e(f"v_add_f32 v{acc}, v{acc}, v{acc+2}"); e(f"v_add_f32 v{acc+1}, v{acc+1}, v{acc+3}")
        e(f"v_permlane16_swap_b32 v{acc}, v{acc+1}")
        e(f"v_add_f32 v{acc}, v{acc}, v{acc+1}")
        e(f"v_add_f32_dpp v{acc}, v{acc}, v{acc} row_ror:8 {DPPF}")
        e(f"v_add_f32_dpp v{acc}, v{acc}, v{acc} row_ror:4 {DPPF}")
        e("s_mov_b32 exec_lo, 0x000f000f"); e("s_mov_b32 exec_hi, 0x000f000f")
        e(f"ds_write_b32 v{vA}, v{acc} offset:{ldsoff}")
        e("s_mov_b64 exec, -1")
    e(f"v_lshrrev_b32 v{vA}, 4, v{vLANE}"); e(f"v_lshlrev_b32 v{vA}, 4, v{vA}")
    e(f"v_and_b32 v{vB}, 3, v{vLANE}"); e(f"v_lshl_add_u32 v{vA}, v{vB}, 2, v{vA}")
    e(f"s_lshl_b32 s{sT1}, s{sWAVE}, 6"); e(f"v_add_u32 v{vA}, s{sT1}, v{vA}")
    for j in range(4): e(f"v_add_f32 v{G0+j}, v{G0+j}, v{G1+j}")
    reduce16(G0, L_RG)
    m_, l_ = MLR, MLR + 1
    e(f"v_max_f32_dpp v{T}, v{m_}, v{m_} quad_perm:[1,0,3,2] {DPPF}")
    e(f"v_max_f32_dpp v{T}, v{T}, v{T} quad_perm:[2,3,0,1] {DPPF}")
    e(f"v_max_f32_dpp v{T}, v{T}, v{T} row_half_mirror {DPPF}")
    e(f"v_sub_f32 v{T}, v{m_}, v{T}"); e(f"v_mul_f32 v{T}, 0x3fb8aa3b, v{T}"); e(f"v_exp_f32 v{T}, v{T}")
    e(f"v_mul_f32 v{T+1}, v{T}, v{l_}")
    e(f"v_add_f32_dpp v{T+1}, v{T+1}, v{T+1} quad_perm:[1,0,3,2] {DPPF}")
    e(f"v_add_f32_dpp v{T+1}, v{T+1}, v{T+1} quad_perm:[2,3,0,1] {DPPF}")
    e(f"v_add_f32_dpp v{T+1}, v{T+1}, v{T+1} row_half_mirror {DPPF}")
    e(f"v_rcp_f32 v{T+2}, v{T+1}")
    e(f"v_mul_f32 v{T+3}, v{T}, v{T+2}")
    e(f"v_lshlrev_b32 v{vB}, 2, v0")
    e(f"ds_write_b32 v{vB}, v{T+3} offset:{L_WT}")
    k.lwait()
    e("s_barrier")
    e(f"v_lshrrev_b32 v{vB}, 2, v0"); e(f"v_lshlrev_b32 v{vB}, 2, v{vB}")
    e(f"ds_read_b32 v{D0}, v{vB} offset:{L_WT}"); e(f"ds_read_b32 v{D0+1}, v{vB} offset:{L_WT+512}")
    e(f"v_and_b32 v{vB}, 15, v{vLANE}"); e(f"v_lshlrev_b32 v{vB}, 2, v{vB}")
    for w_ in range(8):
        e(f"ds_read_b32 v{BQ+w_}, v{vB} offset:{L_RG+64*w_}")
    k.lwait()
    GV = BQ
    e(f"v_add_f32 v{GV}, v{GV}, v{GV+1}"); e(f"v_add_f32 v{GV+2}, v{GV+2}, v{GV+3}")
    e(f"v_add_f32 v{GV+4}, v{GV+4}, v{GV+5}"); e(f"v_add_f32 v{GV+6}, v{GV+6}, v{GV+7}")
    e(f"v_add_f32 v{GV}, v{GV}, v{GV+2}"); e(f"v_add_f32 v{GV+4}, v{GV+4}, v{GV+6}"); e(f"v_add_f32 v{GV}, v{GV}, v{GV+4}")
    silu_bf(GV, GV + 4, GV + 5)
    rbf(GV, GV)
    stamp()
    k.vwait("XV")
    poll([Y0 + j for j in range(4)] + [Y1 + j for j in range(4)], ld_y, "y")
    stamp()
    for j in range(4):
        e(f"v_mul_f32 v{Y0+j}, v{Y0+j}, v{D0}"); e(f"v_fmac_f32 v{Y0+j}, v{Y1+j}, v{D0+1}")
    reduce16(Y0, L_RY)
    k.lwait()
    e("s_barrier")
    e(f"s_cmp_eq_u32 s{sWAVE}, 0")
    k.branch("s_cbranch_scc0 L_end")
    SVv = BQ + 8
    for w_ in range(8):
        e(f"ds_read_b32 v{SVv+w_}, v{vB} offset:{L_RY+64*w_}")
    k.lwait()
    e(f"v_add_f32 v{SVv}, v{SVv}, v{SVv+1}"); e(f"v_add_f32 v{SVv+2}, v{SVv+2}, v{SVv+3}")
    e(f"v_add_f32 v{SVv+4}, v{SVv+4}, v{SVv+5}"); e(f"v_add_f32 v{SVv+6}, v{SVv+6}, v{SVv+7}")
    e(f"v_add_f32 v{SVv}, v{SVv}, v{SVv+2}"); e(f"v_add_f32 v{SVv+4}, v{SVv+4}, v{SVv+6}"); e(f"v_add_f32 v{SVv}, v{SVv}, v{SVv+4}")
    rbf(SVv, SVv)
    e(f"v_mul_f32 v{SVv}, v{SVv}, v{GV}")
    rbf(SVv, SVv)
    e(f"v_lshlrev_b32 v{XV}, 16, v{XV}")
    e(f"v_add_f32 v{SVv}, v{SVv}, v{XV}")
    e(f"v_cvt_pk_bf16_f32 v{SVv}, v{SVv}, v{SVv}")
    SOUT = SV
    srd(SOUT, sOUT, None, 1024)
    e("s_mov_b64 exec, 0xffff")
    e(f"buffer_store_short v{SVv}, v{vCol}, {sr(SOUT)}, 0 offen")
    e("s_mov_b64 exec, -1")
    stamp()
    k.label("L_end")
    if stamps:
        e("s_mov_b64 exec, -1")
        e("v_mov_b32 v8, 0")
        for i, q in enumerate(STS):
            e(f"v_writelane_b32 v8, s{q}, {i}")
        e(f"v_and_b32 v9, 63, v0"); e("v_lshlrev_b32 v9, 3, v9"); e(f"v_add_u32 v9, s{sSTB}, v9"); e("v_mov_b32 v10, v8"); e("v_mov_b32 v11, 0")
        e("s_mov_b64 exec, 0xffff")
        e(f"global_store_dwordx2 v9, v[10:11], s[{sWS}:{sWS+1}]")
    k.label("L_exit")
    e("s_endpgm")
    k.raw(".p2align 6")
    k.raw("L_code_end:")
    for _ in range(64): k.raw("    s_nop 0")
    k.raw('.section .rodata,"a"'); k.raw(".p2align 6"); k.raw(f".amdhsa_kernel {NAME}_kernel")
    k.raw("  .amdhsa_next_free_vgpr 256"); k.raw("  .amdhsa_next_free_sgpr 102"); k.raw("  .amdhsa_accum_offset 256")
    k.raw("  .amdhsa_group_segment_fixed_size 0"); k.raw("  .amdhsa_kernarg_size 88"); k.raw("  .amdhsa_user_sgpr_count 2")
    k.raw("  .amdhsa_user_sgpr_kernarg_segment_ptr 1"); k.raw("  .amdhsa_system_sgpr_workgroup_id_x 1")
    k.raw("  .amdhsa_float_denorm_mode_32 3"); k.raw("  .amdhsa_float_denorm_mode_16_64 3")
    k.raw(".end_amdhsa_kernel")
    open(fname, "w").write(k.text())
    print(fname, "instrs", k.ninstr, "nops", k.nops, "stamps", nst[0])

if __name__ == "__main__":
    gen("m1.s")
    gen("m1_st.s", stamps=True)
```

```python
import sys
from asmgen import K
NAME = "recurrent_scan__gqa_block_cached__dense_activation_silu__decode"

YOFF = 0
GPOFF = 0x80000
MLOFF = 0x100000
HPOFF = 0x110000
STAMPOFF = 0x8000000
L_XN = 0
L_QP = 1024
L_QB = 5120
L_MX = 7168
L_SM = 7200
L_FP = 7424
L_WT = 9472
L_RG = 11520
L_RY = 12032
LDS_BYTES = 16384

DPPF = "row_mask:0xf bank_mask:0xf"

def gen(fname, stamps=False, barevery=4, nt=" nt", spin_limit=200000, D=12, nffn=176, hmap=0, wf=" nt", clrpos=0):
    k = K()
    e = k.e
    k.raw(open("cdna_kernels/" + NAME + ".s.ref").read().split("; Override")[0].rstrip())
    k.raw(f"; @launch grid=(256,1,1) block=(512,1,1) lds={LDS_BYTES}")
    k.raw('.amdgcn_target "amdgcn-amd-amdhsa--gfx950"')
    k.raw(".text"); k.raw(f".globl {NAME}_kernel"); k.raw(".p2align 8"); k.raw(f".type {NAME}_kernel,@function")
    k.raw(f"{NAME}_kernel:")
    vTID, vLANE, vOK, vOV, vOWQ, vOWO, vA, vB = 0, 1, 2, 3, 4, 5, 6, 7
    MASK = 8; SEL = 12; BQ = 16; S = 32; D0, D1 = 40, 44; B0, B1 = 48, 52; OA = 56; T = 60; W = 64; RING = 128
    def ring(j): return RING + 4 * j
    def r4(a): return f"v[{a}:{a+3}]"
    def r2(a): return f"v[{a}:{a+1}]"
    sX, sK, sV, sWQ, sWO, sW1, sW2 = 4, 6, 8, 10, 12, 16, 18
    sOUT, sDBG, sWS = 20, 22, 24
    sWAVE, sH, sC, sPP = 26, 27, 3, 96
    SK, SV, SWQ, SWO, SW1, SW2, SX, SY, SGP, SML, SDBG, SGPG, SMLG = [28 + 4 * i for i in range(13)]
    sT0, sT1, sFR, sCONS = 80, 81, 82, 83
    SCODE = 84; sPC = 84
    sM = 88
    sTMP = 97
    ST = 98
    sSTB = 100
    sFFN = 101
    SHP = SCODE
    nst = [0]
    STS = [6, 7, 8, 9, 10, 11, 12, 13, 14, 15, 16, 17, 18, 19]
    def stamp():
        if not stamps: return
        i = nst[0]; nst[0] += 1
        assert i < 14
        e(f"s_memrealtime s[{ST}:{ST+1}]")
        k.lwait()
        e(f"s_mov_b32 s{STS[i]}, s{ST}")
    def srd(S_, base, add_lo, size):
        if add_lo is None:
            e(f"s_mov_b32 s{S_}, s{base}"); e(f"s_mov_b32 s{S_+1}, s{base+1}")
        else:
            e(f"s_add_u32 s{S_}, s{base}, {add_lo}"); e(f"s_addc_u32 s{S_+1}, s{base+1}, 0")
        e(f"s_mov_b32 s{S_+2}, {size}"); e(f"s_mov_b32 s{S_+3}, 0x20000")
    def sr(S_): return f"s[{S_}:{S_+3}]"
    def rbf(dst, src):
        e(f"v_cvt_pk_bf16_f32 v{dst}, v{src}, v{src}"); e(f"v_and_b32 v{dst}, 0xffff0000, v{dst}")
    def silu(v, t1_, t2_):
        rbf(v, v)
        e(f"v_mul_f32 v{t1_}, 0xbfb8aa3b, v{v}")
        e(f"v_exp_f32 v{t1_}, v{t1_}")
        e(f"v_add_f32 v{t1_}, 1.0, v{t1_}")
        e(f"v_rcp_f32 v{t2_}, v{t1_}")
        e(f"v_mul_f32 v{v}, v{v}, v{t2_}")
    def gemv_fin(acc, ya, yb):
        e(f"v_add_f32_dpp v{ya}, v{acc+1}, v{acc} row_ror:8 {DPPF}")
        e(f"v_add_f32_dpp v{yb}, v{acc+3}, v{acc+2} row_ror:8 {DPPF}")
    def poll(regs_list, reload_fn, name):
        saved = list(k.vmq)
        e(f"s_mov_b32 s{sTMP}, 0")
        k.label(f"L_{name}_loop")
        first = True
        for r in regs_list:
            if first:
                e(f"v_cmp_eq_u32 vcc, -1, v{r}"); first = False
            else:
                e(f"v_cmp_eq_u32 s[{ST}:{ST+1}], -1, v{r}"); e(f"s_or_b64 vcc, vcc, s[{ST}:{ST+1}]")
        e("s_cmp_eq_u64 vcc, 0")
        k.branch(f"s_cbranch_scc1 L_{name}_ok")
        e(f"s_add_u32 s{sTMP}, s{sTMP}, 1"); e(f"s_cmp_gt_u32 s{sTMP}, {spin_limit}"); k.branch(f"s_cbranch_scc1 L_{name}_ok")
        e("s_mov_b64 exec, vcc")
        reload_fn()
        e("s_mov_b64 exec, -1")
        e("s_waitcnt vmcnt(0)")
        k.branch(f"s_branch L_{name}_loop")
        k.label(f"L_{name}_ok")
        k.vmq = saved

    e("s_cmp_ge_u32 s2, 256")
    k.branch("s_cbranch_scc1 L_exit")
    if stamps == 2: e("s_memrealtime s[92:93]")
    e(f"s_load_dwordx16 s[4:19], s[0:1], 0")
    e(f"s_load_dwordx4 s[20:23], s[0:1], 64")
    e(f"s_load_dwordx2 s[24:25], s[0:1], 80")
    e(f"s_getpc_b64 s[{sPC}:{sPC+1}]")
    k.raw("L_pc:")
    e(f"v_and_b32 v{vLANE}, 63, v0")
    e(f"v_lshrrev_b32 v{vA}, 6, v0")
    e(f"v_readfirstlane_b32 s{sWAVE}, v{vA}")
    if hmap == 0:
        e(f"s_and_b32 s{sH}, s2, 31")
        e(f"s_lshr_b32 s{sC}, s2, 5")
    else:
        e(f"s_and_b32 s{sH}, s2, 7"); e(f"s_lshl_b32 s{sH}, s{sH}, 2"); e(f"s_bfe_u32 s{sC}, s2, 0x20003"); e(f"s_add_u32 s{sH}, s{sH}, s{sC}")
        e(f"s_lshr_b32 s{sC}, s2, 5")
    vG, vN = D1, D1 + 1
    t0, t1 = D0, D0 + 1
    vCc, vRho = D0 + 2, D0 + 3
    e(f"v_lshrrev_b32 v{vG}, 4, v{vLANE}")
    e(f"v_and_b32 v{vN}, 15, v{vLANE}")
    e(f"v_lshrrev_b32 v{t0}, 2, v{vN}"); e(f"v_lshlrev_b32 v{t0}, 8, v{t0}")
    e(f"v_lshl_add_u32 v{t0}, v{vG}, 6, v{t0}")
    e(f"v_and_b32 v{t1}, 3, v{vN}"); e(f"v_lshl_add_u32 v{t0}, v{t1}, 4, v{t0}")
    e(f"v_lshl_add_u32 v{vOK}, v{vA}, 12, v{t0}")
    e(f"v_lshrrev_b32 v{vCc}, 1, v{vN}"); e(f"v_and_b32 v{vRho}, 1, v{vN}")
    e(f"v_lshrrev_b32 v{t0}, 1, v{vA}"); e(f"v_lshlrev_b32 v{t0}, 7, v{t0}")
    e(f"v_lshl_add_u32 v{t0}, v{vG}, 5, v{t0}"); e(f"v_add_u32 v{t0}, v{t0}, v{vRho}")
    e(f"v_lshlrev_b32 v{t0}, 13, v{t0}")
    e(f"v_and_b32 v{t1}, 1, v{vA}"); e(f"v_lshl_add_u32 v{t0}, v{t1}, 7, v{t0}")
    e(f"v_lshl_add_u32 v{vOWQ}, v{vCc}, 4, v{t0}")
    e(f"v_lshlrev_b32 v{vB}, 4, v{vLANE}")
    e(f"s_lshl_b32 s{sT0}, s{sH}, 21"); e(f"s_lshl_b32 s{sT1}, s{sC}, 18"); e(f"s_add_u32 s{sT0}, s{sT0}, s{sT1}")
    e(f"s_lshl_b32 s{sT1}, s{sH}, 8")
    k.lwait()
    if stamps == 2:
        e("s_memrealtime s[94:95]")
    srd(SX, sX, None, 1024)
    srd(SK, sK, f"s{sT0}", 262144)
    srd(SWQ, sWQ, f"s{sT1}", 4194304 - 31 * 256)
    srd(SV, sV, f"s{sT0}", 262144)

    L = []
    done = set()
    arrived = set()
    def ld_k(i):
        def f():
            e(f"s_mov_b32 s{sT0}, {(i//4)*32768}")
            e(f"buffer_load_dwordx4 {r4(ring(i))}, v{vOK}, {sr(SK)}, s{sT0} offen offset:{(i%4)*1024}{nt}", f"K{i}")
        return f
    def ld_v(i):
        def f():
            e(f"s_mov_b32 s{sT0}, {(i//4)*32768}")
            e(f"buffer_load_dwordx4 {r4(ring(i))}, v{vOV}, {sr(SV)}, s{sT0} offen offset:{(i%4)*1024}{nt}", f"V{i}")
        return f
    def ld_wq(i):
        def f():
            e(f"s_mov_b32 s{sT0}, {i*16384}")
            e(f"buffer_load_dwordx4 {r4(W+4*i)}, v{vOWQ}, {sr(SWQ)}, s{sT0} offen{wf}", f"WQ{i}")
        return f
    def ld_wo(i):
        def f():
            e(f"s_mov_b32 s{sT0}, {(i//2)*4096}")
            e(f"buffer_load_dwordx4 {r4(W+4*i)}, v{vOWO}, {sr(SWO)}, s{sT0} offen offset:{(i%2)*2048}{wf}", f"WO{i}")
        return f
    W1R, W2R, HPG = ring(30), ring(31), T + 0
    e(f"buffer_load_dwordx4 {r4(T)}, v{vB}, {sr(SX)}, 0 offen", "X")
    ld_wq(0)(); ld_k(0)(); ld_wq(1)(); ld_k(1)()
    e(f"s_lshl_b32 s{sPP}, s{sH}, 3"); e(f"s_add_u32 s{sPP}, s{sPP}, s{sC}")
    e(f"s_mul_i32 s{sT0}, s2, 2979"); e(f"s_lshr_b32 s{sT0}, s{sT0}, 16")
    e(f"s_mul_i32 s{sT1}, s{sT0}, 22"); e(f"s_sub_u32 s{sT1}, s2, s{sT1}")
    e(f"s_cmp_lt_u32 s2, {nffn}"); e(f"s_cselect_b32 s{sFFN}, 1, 0")
    e(f"s_lshl_b32 s{sFR}, s{sT1}, 3"); e(f"s_add_u32 s{sFR}, s{sFR}, s{sT0}"); e(f"s_mul_i32 s{sFR}, s{sFR}, s{sFFN}")
    e(f"s_mul_i32 s{sTMP}, s{sT0}, {64*2752}"); e(f"s_lshl_b32 s{sT1}, s{sT1}, 7"); e(f"s_add_u32 s{sTMP}, s{sTMP}, s{sT1}")
    e(f"s_mul_i32 s{sTMP}, s{sTMP}, s{sFFN}")
    srd(SW1, sW1, f"s{sTMP}", 0)
    e(f"s_sub_u32 s{SW1+2}, {512*2752}, s{sTMP}"); e(f"s_mul_i32 s{SW1+2}, s{SW1+2}, s{sFFN}")
    e(f"v_lshlrev_b32 v{t0}, 3, v{vA}"); e(f"v_lshl_add_u32 v{t0}, v{vG}, 1, v{t0}"); e(f"v_add_u32 v{t0}, v{t0}, v{vRho}")
    e(f"v_mul_u32_u24 v{t0}, 2752, v{t0}"); e(f"v_lshl_add_u32 v{vB}, v{vCc}, 4, v{t0}")
    e(f"buffer_load_dwordx4 {r4(W1R)}, v{vB}, {sr(SW1)}, 0 offen{nt}", "W1")
    ld_wq(2)(); ld_k(2)()
    e(f"s_lshl_b32 s{sT0}, s{sFR}, 13")
    srd(SW2, sW2, f"s{sT0}", 0)
    e(f"s_cmp_lt_u32 s{sFR}, 172"); e(f"s_cselect_b32 s{sT1}, 8192, 0"); e(f"s_mul_i32 s{SW2+2}, s{sT1}, s{sFFN}")
    e(f"s_lshl_b32 s{sT0}, s{sH}, 17")
    srd(SWO, sWO, f"s{sT0}", 131072)
    e(f"s_lshl_b32 s{sT0}, s{sPP}, 11")
    srd(SY, sWS, f"s{sT0}", 2048)
    e(f"s_lshl_b32 s{sT0}, s{sFR}, 11"); e(f"s_add_u32 s{sT0}, s{sT0}, {GPOFF:#x}")
    srd(SGP, sWS, f"s{sT0}", 0); e(f"s_mul_i32 s{SGP+2}, s{sFFN}, 2048")
    e(f"s_lshl_b32 s{sT0}, s{sPP}, 3"); e(f"s_add_u32 s{sT0}, s{sT0}, {MLOFF:#x}")
    srd(SML, sWS, f"s{sT0}", 8)
    srd(SDBG, sDBG, None, 4)
    e(f"s_cmp_ge_u32 s2, 224"); e(f"s_cselect_b32 s{sCONS}, 1, 0")
    e(f"s_sub_u32 s{sT0}, s2, 224"); e(f"s_mul_i32 s{sT0}, s{sT0}, s{sCONS}"); e(f"s_lshl_b32 s{sT0}, s{sT0}, 6")
    e(f"s_add_u32 s{sTMP}, s{sT0}, {GPOFF:#x}")
    srd(SGPG, sWS, f"s{sTMP}", 0); e(f"s_mul_i32 s{SGPG+2}, s{sCONS}, {175*2048+64}")
    srd(SMLG, sWS, f"{MLOFF:#x}", 0); e(f"s_mul_i32 s{SMLG+2}, s{sCONS}, 2048")
    e(f"s_sub_u32 s{sPC}, s{sPC}, L_pc-{NAME}_kernel"); e(f"s_subb_u32 s{sPC+1}, s{sPC+1}, 0")
    e(f"s_mov_b32 s{SCODE+2}, L_code_end-{NAME}_kernel"); e(f"s_mov_b32 s{SCODE+3}, 0x20000")
    e(f"v_lshlrev_b32 v{vB}, 4, v0")
    e(f"v_lshl_add_u32 v{vB}, v{vA}, 10, v{vB}")
    e(f"buffer_load_dwordx4 {r4(ring(29))}, v{vB}, {sr(SCODE)}, 0 offen", "CODE0")
    e(f"buffer_load_dwordx4 {r4(ring(29))}, v{vB}, {sr(SCODE)}, 0 offen offset:1024", "CODE1")
    e(f"s_lshl_b32 s{sT0}, s{sFR}, 8"); e(f"s_add_u32 s{sT0}, s{sT0}, {HPOFF:#x}")
    srd(SHP, sWS, f"s{sT0}", 0); e(f"s_mul_i32 s{SHP+2}, s{sFFN}, 256")
    def clears():
        e(f"v_lshlrev_b32 v{vB}, 2, v0"); e(f"v_mov_b32 v{vA}, -1")
        e(f"buffer_store_dword v{vA}, v{vB}, {sr(SY)}, 0 offen sc1", "CLR0")
        e(f"buffer_store_dword v{vA}, v{vB}, {sr(SGP)}, 0 offen sc1", "CLR1")
        e(f"buffer_store_dword v{vA}, v{vB}, {sr(SML)}, 0 offen sc1", "CLR2")
        e(f"buffer_store_dword v{vA}, v{vB}, {sr(SHP)}, 0 offen sc1", "CLR3")
    ld_wq(3)(); ld_k(3)()
    e(f"v_lshlrev_b32 v{t0}, 4, v{vLANE}"); e(f"v_lshl_add_u32 v{vOV}, v{vA}, 12, v{t0}")
    e(f"v_lshlrev_b32 v{t0}, 15, v{vG}"); e(f"v_lshl_add_u32 v{t0}, v{vRho}, 10, v{t0}")
    e(f"v_lshl_add_u32 v{t0}, v{vA}, 7, v{t0}"); e(f"v_lshl_add_u32 v{vOWO}, v{vCc}, 4, v{t0}")
    e(f"v_lshlrev_b32 v{t0}, 4, v{vRho}")
    e(f"v_mov_b32 v{t1}, 0xffff"); e(f"v_lshlrev_b32 v{t0}, v{t0}, v{t1}")
    for j in range(4):
        e(f"v_cmp_eq_u32 vcc, {j}, v{vCc}")
        e(f"v_cndmask_b32 v{MASK+j}, 0, v{t0}, vcc")
    e(f"v_lshrrev_b32 v{t0}, 3, v{vN}")
    e(f"v_mul_u32_u24 v{t0}, 0x0202, v{t0}"); e(f"v_add_u32 v{t0}, 0x0100, v{t0}")
    e(f"v_or_b32 v{t1}, 0x0c0c0000, v{t0}")
    e(f"v_lshlrev_b32 v{t0}, 16, v{t0}"); e(f"v_or_b32 v{t0}, 0x0c0c, v{t0}")
    e(f"v_cmp_eq_u32 vcc, 1, v{vRho}")
    e(f"v_cndmask_b32 v{t0}, v{t1}, v{t0}, vcc")
    e(f"v_bfe_u32 v{t1}, v{vN}, 1, 2")
    e(f"v_mov_b32 v{vB}, 0x0c0c0c0c")
    for j in range(4):
        e(f"v_cmp_eq_u32 vcc, {j}, v{t1}")
        e(f"v_cndmask_b32 v{SEL+j}, v{vB}, v{t0}, vcc")
    if stamps:
        e(f"s_lshl_b32 s{sSTB}, s2, 3"); e(f"s_add_u32 s{sSTB}, s{sSTB}, s{sWAVE}"); e(f"s_lshl_b32 s{sSTB}, s{sSTB}, 7")
        e(f"s_add_u32 s{sSTB}, s{sSTB}, {STAMPOFF:#x}")
        for q in STS: e(f"s_mov_b32 s{q}, 0")
        if stamps == 2:
            k.lwait()
            e(f"s_mov_b32 s{STS[0]}, s92"); e(f"s_mov_b32 s{STS[1]}, s94"); nst[0] = 2
    stamp()
    for t in range(4):
        m = 0x000F000F << (4 * t)
        e(f"s_mov_b32 s{sM+2*t}, {m:#x}"); e(f"s_mov_b32 s{sM+2*t+1}, {m:#x}")

    for i in range(4, 16):
        if i == 4 + clrpos: L.append(("CLR", clears, "LN"))
        L += [(f"WQ{i}", ld_wq(i), None), (f"K{i}", ld_k(i), None)]
    for i in range(16):
        c = None
        if 16 + i == 30: c = "F1done"
        L += [(f"K{16+i}", ld_k(16 + i), c), (f"WO{i}", ld_wo(i), f"q{i}")]
    def ld_cnt():
        e(f"v_mov_b32 v{vB}, 0")
        e(f"buffer_load_dword v{T+3}, v{vB}, {sr(SDBG)}, 0 offen sc1", "CNT")
    def ld_w2():
        e(f"v_lshrrev_b32 v{vA}, 4, v{vLANE}"); e(f"v_lshlrev_b32 v{vA}, 11, v{vA}")
        e(f"v_and_b32 v{vB}, 1, v{vLANE}"); e(f"v_lshl_add_u32 v{vA}, v{vB}, 10, v{vA}")
        e(f"v_bfe_u32 v{vB}, v{vLANE}, 1, 3"); e(f"v_lshl_add_u32 v{vA}, v{vB}, 4, v{vA}")
        e(f"s_lshl_b32 s{sT1}, s{sWAVE}, 7"); e(f"v_add_u32 v{vA}, s{sT1}, v{vA}")
        e(f"buffer_load_dwordx4 {r4(W2R)}, v{vA}, {sr(SW2)}, 0 offen{nt}", "W2")
    W2R = BQ
    HPG = BQ + 4
    SHPG = SW1
    def ld_hpg(tag="HPG"):
        e(f"v_and_b32 v{vA}, 7, v{vLANE}"); e(f"v_lshlrev_b32 v{vA}, 8, v{vA}")
        e(f"v_lshrrev_b32 v{vB}, 4, v{vLANE}"); e(f"v_lshl_add_u32 v{vA}, v{vB}, 3, v{vA}")
        e(f"buffer_load_dwordx2 {r2(HPG)}, v{vA}, {sr(SHPG)}, 0 offen sc1", tag)
    for i in range(32):
        L.append((f"V{i}", ld_v(i), f"qk{i//4}"))
        if i == 1: L.append(("CNT", ld_cnt, "SM"))
        if i == 3: L.append(("W2", ld_w2, "SM"))
        if i == 13: L.append(("HPG", ld_hpg, "CNTok"))
    ptr = [0]
    nissued = [0]
    def try_issue():
        if ptr[0] >= len(L): return False
        tag, fn, c = L[ptr[0]]
        if c is not None and c not in done: return False
        if len(k.vmq) >= D: return False
        if barevery and nissued[0] % barevery == 0 and nissued[0] > 0: e("s_barrier")
        fn(); ptr[0] += 1; nissued[0] += 1
        return True
    def wait_for(tag):
        if tag in arrived: return
        if tag in k.vmq:
            idx = k.vmq.index(tag)
            for t_ in k.vmq[:idx + 1]: arrived.add(t_)
            k.vwait(tag)
    def t_ln():
        if stamps == 2: stamp()
        XF = S
        for j in range(4):
            e(f"v_lshlrev_b32 v{XF+2*j}, 16, v{T+j}")
            e(f"v_and_b32 v{XF+2*j+1}, 0xffff0000, v{T+j}")
        def wave_reduce(v, op, tmp_s):
            for sh in (8, 4, 2, 1):
                e(f"{op}_dpp v{v}, v{v}, v{v} row_ror:{sh} {DPPF}")
            e(f"{op}_dpp v{v}, v{v}, v{v} row_bcast:15 row_mask:0xa bank_mask:0xf")
            e(f"{op}_dpp v{v}, v{v}, v{v} row_bcast:31 row_mask:0xc bank_mask:0xf")
            e(f"v_readlane_b32 s{tmp_s}, v{v}, 63")
        a = D0
        e(f"v_add_f32 v{a}, v{XF}, v{XF+1}"); e(f"v_add_f32 v{a+1}, v{XF+2}, v{XF+3}")
        e(f"v_add_f32 v{a+2}, v{XF+4}, v{XF+5}"); e(f"v_add_f32 v{a+3}, v{XF+6}, v{XF+7}")
        e(f"v_add_f32 v{a}, v{a}, v{a+1}"); e(f"v_add_f32 v{a+2}, v{a+2}, v{a+3}"); e(f"v_add_f32 v{a}, v{a}, v{a+2}")
        wave_reduce(a, "v_add_f32", sT1)
        vMean = D1
        e(f"v_mov_b32 v{vMean}, s{sT1}"); e(f"v_mul_f32 v{vMean}, 0x3b000000, v{vMean}")
        e(f"v_sub_f32 v{a+1}, v{XF}, v{vMean}"); e(f"v_mul_f32 v{a}, v{a+1}, v{a+1}")
        for j in range(1, 8):
            e(f"v_sub_f32 v{a+1+(j%2)}, v{XF+j}, v{vMean}"); e(f"v_fmac_f32 v{a}, v{a+1+(j%2)}, v{a+1+(j%2)}")
        wave_reduce(a, "v_add_f32", sT1)
        vVar, vR, vRi = D1 + 1, D1 + 2, D1 + 3
        e(f"v_mov_b32 v{vVar}, s{sT1}"); e(f"v_mul_f32 v{vVar}, 0x3b000000, v{vVar}")
        rbf(vVar, vVar)
        e(f"v_add_f32 v{vVar}, 0x3727c5ac, v{vVar}")
        rbf(vVar, vVar)
        e(f"v_sqrt_f32 v{vR}, v{vVar}")
        rbf(vR, vR)
        e(f"v_rcp_f32 v{vRi}, v{vR}")
        rbf(vMean, vMean)
        for j in range(4):
            e(f"v_sub_f32 v{XF+2*j}, v{XF+2*j}, v{vMean}"); e(f"v_sub_f32 v{XF+2*j+1}, v{XF+2*j+1}, v{vMean}")
            e(f"v_cvt_pk_bf16_f32 v{a}, v{XF+2*j}, v{XF+2*j+1}")
            e(f"v_lshlrev_b32 v{XF+2*j}, 16, v{a}"); e(f"v_and_b32 v{XF+2*j+1}, 0xffff0000, v{a}")
        for j in range(8):
            q0, er = B0 + 2 * (j % 2), B0 + 1 + 2 * (j % 2)
            e(f"v_mul_f32 v{q0}, v{XF+j}, v{vRi}")
            e(f"v_fma_f32 v{er}, -v{q0}, v{vR}, v{XF+j}")
            e(f"v_fma_f32 v{XF+j}, v{er}, v{vRi}, v{q0}")
        for j in range(4):
            e(f"v_cvt_pk_bf16_f32 v{T+j}, v{XF+2*j}, v{XF+2*j+1}")
        e(f"v_lshlrev_b32 v{vA}, 4, v{vLANE}")
        e(f"ds_write_b128 v{vA}, {r4(T)} offset:{L_XN}")
        e(f"v_lshrrev_b32 v{vA}, 4, v{vLANE}"); e(f"v_lshlrev_b32 v{vB}, 2, v{vA}"); e(f"v_lshlrev_b32 v{vA}, 6, v{vA}")
        e(f"s_lshr_b32 s{sT1}, s{sWAVE}, 1"); e(f"s_lshl_b32 s{sT1}, s{sT1}, 8")
        e(f"v_add_u32 v{vA}, s{sT1}, v{vA}")
        e(f"s_and_b32 s{sT1}, s{sFR}, 7"); e(f"s_lshl_b32 s{sT1}, s{sT1}, 7"); e(f"s_lshl_b32 s{sTMP}, s{sWAVE}, 4"); e(f"s_add_u32 s{sT1}, s{sT1}, s{sTMP}")
        e(f"v_add_u32 v{vB}, s{sT1}, v{vB}")
        k.lwait()
        for u in range(4):
            e(f"ds_read_b128 {r4(BQ+4*u)}, v{vA} offset:{L_XN+16*u}")
        e(f"ds_read_b32 v{T}, v{vB} offset:{L_XN}")
        k.lwait()
        done.add("LN")
    def t_f1():
        for j in range(4): e(f"v_perm_b32 v{B1+j}, v{T}, v{T}, v{SEL+j}")
        e(f"v_mfma_f32_16x16x32_bf16 {r4(D1)}, {r4(W1R)}, {r4(B1)}, 0")
        e(f"v_lshrrev_b32 v{vA}, 4, v{vLANE}"); e(f"v_lshlrev_b32 v{vA}, 6, v{vA}")
        e(f"v_and_b32 v{vB}, 15, v{vLANE}"); e(f"v_lshl_add_u32 v{vA}, v{vB}, 2, v{vA}")
        e(f"s_lshl_b32 s{sT1}, s{sWAVE}, 8"); e(f"v_add_u32 v{vA}, s{sT1}, v{vA}")
        gemv_fin(D1, T, T + 1)
        e("s_mov_b32 exec_lo, 0x00ff00ff"); e("s_mov_b32 exec_hi, 0x00ff00ff")
        e(f"ds_write_b32 v{vA}, v{T} offset:{L_FP}"); e(f"ds_write_b32 v{vA}, v{T+1} offset:{L_FP+32}")
        e("s_mov_b64 exec, -1")
        done.add("F1done")
    def t_q(t):
        Bt = B0 if t % 2 == 0 else B1
        for j in range(4):
            e(f"v_perm_b32 v{Bt+j}, v{BQ+t}, v{BQ+t}, v{SEL+j}")
        e(f"v_mfma_f32_16x16x32_bf16 {r4(OA)}, {r4(W+4*t)}, {r4(Bt)}, {'0' if t == 0 else r4(OA)}")
        done.add(f"q{t}")
    def t_qfin():
        gemv_fin(OA, T, T + 1)
        e(f"v_lshrrev_b32 v{vA}, 4, v{vLANE}"); e(f"v_lshlrev_b32 v{vA}, 6, v{vA}")
        e(f"v_and_b32 v{vB}, 15, v{vLANE}"); e(f"v_lshl_add_u32 v{vA}, v{vB}, 2, v{vA}")
        e(f"s_lshr_b32 s{sT1}, s{sWAVE}, 1"); e(f"s_lshl_b32 s{sT1}, s{sT1}, 9")
        e(f"s_and_b32 s{sTMP}, s{sWAVE}, 1"); e(f"s_lshl_b32 s{sTMP}, s{sTMP}, 8"); e(f"s_add_u32 s{sT1}, s{sT1}, s{sTMP}")
        e(f"v_add_u32 v{vA}, s{sT1}, v{vA}")
        e("s_mov_b32 exec_lo, 0x00ff00ff"); e("s_mov_b32 exec_hi, 0x00ff00ff")
        e(f"ds_write_b32 v{vA}, v{T} offset:{L_QP}"); e(f"ds_write_b32 v{vA}, v{T+1} offset:{L_QP+32}")
        e("s_mov_b64 exec, -1")
        k.lwait()
        e("s_barrier")
        stamp()
        e(f"v_lshlrev_b32 v{vA}, 3, v{vLANE}")
        for rq in range(4):
            e(f"ds_read_b64 {r2(S+2*rq)}, v{vA} offset:{L_QP+512*rq}")
        e(f"v_lshlrev_b32 v{vB}, 2, v{vLANE}")
        HF = BQ
        for w_ in range(8):
            e(f"ds_read_b32 v{HF+w_}, v{vB} offset:{L_FP+256*w_}")
        e(f"v_lshlrev_b32 v{vA}, 2, v0"); e(f"v_mov_b32 v{T}, 1")
        e(f"buffer_atomic_add v{T}, v{vA}, {sr(SDBG)}, 0 offen sc1", "ATOM")
        k.lwait()
        e(f"v_pk_add_f32 {r2(S)}, {r2(S)}, {r2(S+2)}"); e(f"v_pk_add_f32 {r2(S+4)}, {r2(S+4)}, {r2(S+6)}")
        e(f"v_pk_add_f32 {r2(S)}, {r2(S)}, {r2(S+4)}")
        e(f"v_cvt_pk_bf16_f32 v{S}, v{S}, v{S+1}")
        e(f"s_lshl_b32 s{sT1}, s{sWAVE}, 8")
        e(f"v_add_u32 v{vB}, s{sT1}, v{vB}")
        e(f"ds_write_b32 v{vB}, v{S} offset:{L_QB}")
        e(f"v_pk_add_f32 {r2(HF)}, {r2(HF)}, {r2(HF+2)}"); e(f"v_pk_add_f32 {r2(HF+4)}, {r2(HF+4)}, {r2(HF+6)}")
        e(f"v_pk_add_f32 {r2(HF)}, {r2(HF)}, {r2(HF+4)}"); e(f"v_add_f32 v{HF}, v{HF}, v{HF+1}")
        e(f"v_min_u32 v{HF}, -2, v{HF}")
        e(f"buffer_store_dword v{HF}, v{vA}, {sr(SHP)}, 0 offen sc1", "HPST")
        e(f"v_lshrrev_b32 v{vA}, 4, v{vLANE}"); e(f"v_lshlrev_b32 v{vA}, 6, v{vA}")
        e(f"v_and_b32 v{vB}, 3, v{vLANE}"); e(f"v_lshl_add_u32 v{vA}, v{vB}, 4, v{vA}"); e(f"v_add_u32 v{vA}, s{sT1}, v{vA}")
        k.lwait()
        e(f"ds_read_b128 {r4(T)}, v{vA} offset:{L_QB}")
        e(f"v_lshrrev_b32 v{vA}, 4, v{vLANE}"); e(f"v_and_b32 v{vB}, 15, v{vLANE}")
        e(f"v_lshl_add_u32 v{vA}, v{vA}, 3, v{vB}"); e(f"v_lshlrev_b32 v{vA}, 3, v{vA}")
        e(f"v_add_u32 v{vA}, s{sT1}, v{vA}")
        e(f"v_cmp_gt_u32 vcc, 8, v{vB}"); e(f"v_mov_b32 v{vB}, 0x10000"); e(f"v_cndmask_b32 v{vOWQ}, v{vB}, v{vA}, vcc")
        e(f"s_lshr_b32 s{sTMP}, s{sFR}, 3"); e(f"s_lshl_b32 s{sTMP}, s{sTMP}, 11"); e(f"s_and_b32 s{sT1}, s{sFR}, 7"); e(f"s_lshl_b32 s{sT1}, s{sT1}, 5")
        e(f"s_add_u32 s{sTMP}, s{sTMP}, s{sT1}"); e(f"s_add_u32 s{sTMP}, s{sTMP}, {HPOFF:#x}")
        srd(SHPG, sWS, f"s{sTMP}", 0); e(f"s_mul_i32 s{SHPG+2}, s{sFFN}, {7*256+32}")
        k.lwait()
        for t in range(4):
            for j in range(4):
                e(f"v_cndmask_b32 v{BQ+4*t+j}, 0, v{T+j}, s[{sM+2*t}:{sM+2*t+1}]")
        done.add("qfin")
        stamp()
    vOY = vOWQ
    pend_extract = []
    def qk_extract(i, Dr):
        e(f"v_mov_b32_dpp v{S+i}, v{Dr} quad_perm:[0,0,0,0] {DPPF}")
        for j in range(1, 4):
            e(f"v_add_f32_dpp v{S+i}, v{Dr+j}, v{S+i} quad_perm:[{j},{j},{j},{j}] {DPPF}")
    def t_qk(i):
        Dr = D0 if i % 2 == 0 else D1
        for t in range(4):
            e(f"v_mfma_f32_16x16x32_bf16 {r4(Dr)}, {r4(ring(4*i+t))}, {r4(BQ+4*t)}, {'0' if t == 0 else r4(Dr)}")
        done.add(f"qk{i}")
        if i > 0: qk_extract(i - 1, D1 if i % 2 == 0 else D0)
    vM = T + 2
    def t_sm():
        qk_extract(7, D1)
        for i in range(0, 8, 2):
            e(f"v_cvt_pk_bf16_f32 v{T}, v{S+i}, v{S+i+1}")
            e(f"v_lshlrev_b32 v{S+i}, 16, v{T}"); e(f"v_and_b32 v{S+i+1}, 0xffff0000, v{T}")
            e(f"v_mul_f32 v{S+i}, 0x3db504f3, v{S+i}"); e(f"v_mul_f32 v{S+i+1}, 0x3db504f3, v{S+i+1}")
            e(f"v_cvt_pk_bf16_f32 v{T}, v{S+i}, v{S+i+1}")
            e(f"v_lshlrev_b32 v{S+i}, 16, v{T}"); e(f"v_and_b32 v{S+i+1}, 0xffff0000, v{T}")
        e(f"v_max3_f32 v{T}, v{S}, v{S+1}, v{S+2}"); e(f"v_max3_f32 v{T}, v{T}, v{S+3}, v{S+4}")
        e(f"v_max3_f32 v{T}, v{T}, v{S+5}, v{S+6}"); e(f"v_max_f32 v{T}, v{T}, v{S+7}")
        for sh in (8, 4):
            e(f"v_max_f32_dpp v{T}, v{T}, v{T} row_ror:{sh} {DPPF}")
        e(f"v_max_f32_dpp v{T}, v{T}, v{T} row_bcast:15 row_mask:0xa bank_mask:0xf")
        e(f"v_max_f32_dpp v{T}, v{T}, v{T} row_bcast:31 row_mask:0xc bank_mask:0xf")
        e(f"v_readlane_b32 s{sT1}, v{T}, 63")
        e(f"s_lshl_b32 s{sTMP}, s{sWAVE}, 2")
        e(f"v_mov_b32 v{vA}, s{sTMP}"); e(f"v_mov_b32 v{T}, s{sT1}")
        e(f"ds_write_b32 v{vA}, v{T} offset:{L_MX}")
        k.lwait()
        e("s_barrier")
        stamp()
        e(f"v_mov_b32 v{vB}, 0")
        e(f"ds_read_b128 {r4(D0)}, v{vB} offset:{L_MX}"); e(f"ds_read_b128 {r4(D1)}, v{vB} offset:{L_MX+16}")
        k.lwait()
        e(f"v_max3_f32 v{vM}, v{D0}, v{D0+1}, v{D0+2}"); e(f"v_max3_f32 v{vM}, v{vM}, v{D0+3}, v{D1}")
        e(f"v_max3_f32 v{vM}, v{vM}, v{D1+1}, v{D1+2}"); e(f"v_max_f32 v{vM}, v{vM}, v{D1+3}")
        for i in range(8):
            e(f"v_sub_f32 v{S+i}, v{S+i}, v{vM}"); e(f"v_mul_f32 v{S+i}, 0x3fb8aa3b, v{S+i}")
        for i in range(8):
            e(f"v_exp_f32 v{S+i}, v{S+i}")
        e(f"v_add_f32 v{T}, v{S}, v{S+1}"); e(f"v_add_f32 v{T+1}, v{S+2}, v{S+3}")
        e(f"v_add_f32 v{D0}, v{S+4}, v{S+5}"); e(f"v_add_f32 v{D0+1}, v{S+6}, v{S+7}")
        e(f"v_add_f32 v{T}, v{T}, v{T+1}"); e(f"v_add_f32 v{D0}, v{D0}, v{D0+1}"); e(f"v_add_f32 v{T}, v{T}, v{D0}")
        for sh in (8, 4):
            e(f"v_add_f32_dpp v{T}, v{T}, v{T} row_ror:{sh} {DPPF}")
        e(f"v_add_f32_dpp v{T}, v{T}, v{T} row_bcast:15 row_mask:0xa bank_mask:0xf")
        e(f"v_add_f32_dpp v{T}, v{T}, v{T} row_bcast:31 row_mask:0xc bank_mask:0xf")
        e(f"v_readlane_b32 s{sT1}, v{T}, 63")
        e(f"v_mov_b32 v{T}, s{sT1}")
        e(f"ds_write_b32 v{vA}, v{T} offset:{L_SM}")
        for i in range(8):
            e(f"v_cvt_pk_bf16_f32 v{S+i}, v{S+i}, v{S+i}")
        done.add("SM")
    def t_ml():
        k.lwait(); e("s_barrier")
        e(f"v_mov_b32 v{vB}, 0")
        e(f"ds_read_b128 {r4(D0)}, v{vB} offset:{L_SM}"); e(f"ds_read_b128 {r4(D1)}, v{vB} offset:{L_SM+16}")
        k.lwait()
        e(f"v_pk_add_f32 {r2(D0)}, {r2(D0)}, {r2(D0+2)}"); e(f"v_pk_add_f32 {r2(D1)}, {r2(D1)}, {r2(D1+2)}")
        e(f"v_pk_add_f32 {r2(D0)}, {r2(D0)}, {r2(D1)}"); e(f"v_add_f32 v{T+1}, v{D0}, v{D0+1}")
        e(f"v_min_u32 v{T}, -2, v{vM}"); e(f"v_min_u32 v{T+1}, -2, v{T+1}")
        e(f"v_lshlrev_b32 v{vB}, 3, v0")
        e(f"buffer_store_dwordx2 {r2(T)}, v{vB}, {sr(SML)}, 0 offen sc1", "MLST")
        done.add("ML")
    def t_cnt():
        e(f"v_readfirstlane_b32 s{sT1}, v{T+3}")
        e(f"s_or_b32 s{sTMP}, s{sCONS}, s{sFFN}")
        e(f"s_cmp_eq_u32 s{sTMP}, 0"); k.branch("s_cbranch_scc1 L_cnt_ok")
        e(f"s_mov_b32 s{sTMP}, 0")
        k.label("L_cnt_loop")
        e(f"s_cmp_eq_u32 s{sT1}, 256"); k.branch("s_cbranch_scc1 L_cnt_ok")
        e(f"s_add_u32 s{sTMP}, s{sTMP}, 1"); e(f"s_cmp_gt_u32 s{sTMP}, {spin_limit}"); k.branch("s_cbranch_scc1 L_cnt_ok")
        e("s_sleep 2")
        e(f"v_mov_b32 v{vB}, 0")
        e(f"buffer_load_dword v{T+3}, v{vB}, {sr(SDBG)}, 0 offen sc1"); k.vmq.pop()
        e("s_waitcnt vmcnt(0)")
        e(f"v_readfirstlane_b32 s{sT1}, v{T+3}")
        k.branch("s_branch L_cnt_loop")
        k.label("L_cnt_ok")
        done.add("CNTok")
    def t_f2():
        def rl():
            ld_hpg("HPGr"); k.vmq.pop()
        poll([HPG, HPG + 1], rl, "hp")
        for r in (HPG, HPG + 1):
            e(f"v_add_f32_dpp v{r}, v{r}, v{r} quad_perm:[1,0,3,2] {DPPF}")
        for r in (HPG, HPG + 1):
            e(f"v_add_f32_dpp v{r}, v{r}, v{r} quad_perm:[2,3,0,1] {DPPF}")
        for r in (HPG, HPG + 1):
            e(f"v_add_f32_dpp v{r}, v{r}, v{r} row_half_mirror {DPPF}")
        silu(HPG, BQ + 8, BQ + 9); silu(HPG + 1, BQ + 10, BQ + 11)
        e(f"v_cvt_pk_bf16_f32 v{HPG}, v{HPG}, v{HPG+1}")
        for j in range(4): e(f"v_perm_b32 v{BQ+8+j}, v{HPG}, v{HPG}, v{SEL+j}")
        e(f"v_mfma_f32_16x16x32_bf16 {r4(D0)}, {r4(W2R)}, {r4(BQ+8)}, 0")
        gemv_fin(D0, BQ + 12, BQ + 13)
        e(f"v_min_u32 v{BQ+12}, -2, v{BQ+12}"); e(f"v_min_u32 v{BQ+13}, -2, v{BQ+13}")
        e(f"buffer_store_dwordx2 {r2(BQ+12)}, v{vOY}, {sr(SGP)}, 0 offen sc1", "GPST")
        done.add("F2")
        stamp()
    def t_pv(i, t):
        Bt = B0 if t % 2 == 0 else B1
        for j in range(4):
            e(f"v_and_b32_dpp v{Bt+j}, v{S+i}, v{MASK+j} row_newbcast:{4*t} {DPPF}")
        first = (i == 0 and t == 0)
        e(f"v_mfma_f32_16x16x32_bf16 {r4(OA)}, {r4(ring(4*i+t))}, {r4(Bt)}, {'0' if first else r4(OA)}")
    tasks = []
    tasks.append(("LN", [], ["X"], t_ln))
    tasks.append(("F1", ["LN"], ["W1"], t_f1))
    for t in range(16):
        tasks.append((f"Q{t}", ["LN"] + ([f"q{t-1}"] if t else []), [f"WQ{t}"], (lambda t=t: t_q(t))))
    tasks.append(("QF", ["q15", "F1done"], ["CLR3"], t_qfin))
    for i in range(8):
        tasks.append((f"QK{i}", ["qfin"] + ([f"qk{i-1}"] if i else []), [f"K{4*i+3}"], (lambda i=i: t_qk(i))))
    tasks.append(("SMX", ["qk7"], [], t_sm))
    tasks.append(("CNTC", ["SM"], ["CNT"], t_cnt))
    tasks.append(("F2T", ["CNTok"], ["HPG", "W2"], t_f2))
    pvdone = []
    for i in range(8):
        for t in range(4):
            prev = [] if (i == 0 and t == 0) else [f"pv{4*i+t-1}"]
            def mk(i=i, t=t):
                def f():
                    t_pv(i, t); done.add(f"pv{4*i+t}")
                return f
            tasks.append((f"PV{i}_{t}", ["SM"] + prev, [f"V{4*i+t}"], mk()))
        if i == 0: tasks.append(("MLT", ["pv3"], [], t_ml))
    pending = list(tasks)
    def run_ready():
        ran = False
        again = True
        while again:
            again = False
            for tsk in list(pending):
                name, nd, na, fn = tsk
                if all(x in done for x in nd) and all(x in arrived for x in na):
                    fn(); pending.remove(tsk); ran = True; again = True
                    break
        return ran
    guard = 0
    while pending or ptr[0] < len(L):
        guard += 1; assert guard < 10000
        if run_ready(): continue
        if try_issue(): continue
        assert k.vmq, ("deadlock", [p[0] for p in pending], ptr[0])
        wait_for(k.vmq[0])
    stamp()
    e(f"v_lshrrev_b32 v{vA}, 4, v{vLANE}"); e(f"v_lshlrev_b32 v{vA}, 7, v{vA}")
    e(f"v_and_b32 v{vB}, 15, v{vLANE}"); e(f"v_lshl_add_u32 v{vA}, v{vB}, 2, v{vA}")
    e(f"s_lshl_b32 s{sT1}, s{sWAVE}, 9"); e(f"v_add_u32 v{vA}, s{sT1}, v{vA}")
    e("s_mov_b32 exec_lo, 0x00ff00ff"); e("s_mov_b32 exec_hi, 0x00ff00ff")
    for j in range(4):
        e(f"ds_write_b32 v{vA}, v{OA+j} offset:{L_QP+32*j}")
    e("s_mov_b64 exec, -1")
    e(f"v_lshlrev_b32 v{vA}, 3, v{vLANE}")
    k.lwait()
    e("s_barrier")
    for w_ in range(8):
        e(f"ds_read_b64 {r2(BQ+2*w_)}, v{vA} offset:{L_QP+512*w_}", f"o{w_}")
    G0, G1, MLR = ring(0), ring(1), ring(2)
    vGO = vOK
    e(f"v_lshrrev_b32 v{vB}, 2, v0"); e(f"v_lshlrev_b32 v{vB}, 11, v{vB}")
    e(f"v_and_b32 v{T}, 3, v0"); e(f"v_lshl_add_u32 v{vGO}, v{T}, 4, v{vB}")
    e(f"s_mov_b32 s{sT0}, {128*2048}")
    e(f"buffer_load_dwordx4 {r4(G0)}, v{vGO}, {sr(SGPG)}, 0 offen sc1", "G0")
    e(f"buffer_load_dwordx4 {r4(G1)}, v{vGO}, {sr(SGPG)}, s{sT0} offen sc1", "G1")
    e(f"v_lshlrev_b32 v{vB}, 3, v0")
    e(f"buffer_load_dwordx2 {r2(MLR)}, v{vB}, {sr(SMLG)}, 0 offen sc1", "MLG")
    k.lwait("o3")
    e(f"v_pk_add_f32 {r2(BQ)}, {r2(BQ)}, {r2(BQ+2)}"); e(f"v_pk_add_f32 {r2(BQ+4)}, {r2(BQ+4)}, {r2(BQ+6)}")
    k.lwait("o7")
    e(f"v_pk_add_f32 {r2(BQ+8)}, {r2(BQ+8)}, {r2(BQ+10)}"); e(f"v_pk_add_f32 {r2(BQ+12)}, {r2(BQ+12)}, {r2(BQ+14)}")
    e(f"v_pk_add_f32 {r2(BQ)}, {r2(BQ)}, {r2(BQ+4)}"); e(f"v_pk_add_f32 {r2(BQ+8)}, {r2(BQ+8)}, {r2(BQ+12)}")
    e(f"v_pk_add_f32 {r2(BQ)}, {r2(BQ)}, {r2(BQ+8)}")
    e(f"v_cvt_pk_bf16_f32 v{T}, v{BQ}, v{BQ+1}")
    assert "WO15" in arrived
    def bld(t):
        P = S + (t % 4); Bt = [B0, B1, D0, D1][t % 4]
        e(f"v_mov_b32_dpp v{P}, v{T} row_newbcast:{t} {DPPF}")
        for j in range(4):
            e(f"v_perm_b32 v{Bt+j}, v{P}, v{P}, v{SEL+j}")
    bld(0); bld(1)
    for t in range(16):
        if t + 2 < 16: bld(t + 2)
        Bt = [B0, B1, D0, D1][t % 4]
        e(f"v_mfma_f32_16x16x32_bf16 {r4(OA)}, {r4(W+4*t)}, {r4(Bt)}, {'0' if t == 0 else r4(OA)}")
    gemv_fin(OA, T, T + 1)
    e(f"v_min_u32 v{T}, -2, v{T}"); e(f"v_min_u32 v{T+1}, -2, v{T+1}")
    e(f"buffer_store_dwordx2 {r2(T)}, v{vOY}, {sr(SY)}, 0 offen sc1", "YST")
    stamp()
    e(f"s_cmp_eq_u32 s{sCONS}, 0")
    k.branch("s_cbranch_scc1 L_end")
    Y0, Y1 = ring(3), ring(4)
    SYG = SK
    e(f"s_sub_u32 s{sT1}, s2, 224"); e(f"s_lshl_b32 s{sT1}, s{sT1}, 6")
    srd(SYG, sWS, f"s{sT1}", 255 * 2048 + 64)
    def ld_y():
        e(f"buffer_load_dwordx4 {r4(Y0)}, v{vGO}, {sr(SYG)}, 0 offen sc1", "Y0")
        e(f"buffer_load_dwordx4 {r4(Y1)}, v{vGO}, {sr(SYG)}, s{sT0} offen sc1", "Y1")
    ld_y()
    vCol = vOV
    e(f"v_and_b32 v{vA}, 3, v{vLANE}"); e(f"v_lshlrev_b32 v{vA}, 1, v{vA}")
    e(f"v_bfe_u32 v{vB}, v{vLANE}, 2, 1"); e(f"v_lshl_add_u32 v{vA}, v{vB}, 3, v{vA}")
    e(f"v_bfe_u32 v{vB}, v{vLANE}, 3, 1"); e(f"v_add_u32 v{vA}, v{vA}, v{vB}")
    e(f"s_lshr_b32 s{sT1}, s{sT1}, 2")
    e(f"v_add_u32 v{vA}, s{sT1}, v{vA}"); e(f"v_lshlrev_b32 v{vCol}, 1, v{vA}")
    XV = ring(5)
    e(f"buffer_load_ushort v{XV}, v{vCol}, {sr(SX)}, 0 offen", "XV")
    k.vwait("MLG")
    def ld_g():
        e(f"buffer_load_dwordx4 {r4(G0)}, v{vGO}, {sr(SGPG)}, 0 offen sc1"); e(f"buffer_load_dwordx4 {r4(G1)}, v{vGO}, {sr(SGPG)}, s{sT0} offen sc1")
    poll([G0 + j for j in range(4)] + [G1 + j for j in range(4)], ld_g, "g")
    def ld_ml():
        e(f"v_lshlrev_b32 v{vB}, 3, v0")
        e(f"buffer_load_dwordx2 {r2(MLR)}, v{vB}, {sr(SMLG)}, 0 offen sc1")
    poll([MLR, MLR + 1], ld_ml, "ml")
    def reduce16(acc, ldsoff):
        e(f"v_permlane32_swap_b32 v{acc}, v{acc+2}"); e(f"v_permlane32_swap_b32 v{acc+1}, v{acc+3}")
        e(f"v_add_f32 v{acc}, v{acc}, v{acc+2}"); e(f"v_add_f32 v{acc+1}, v{acc+1}, v{acc+3}")
        e(f"v_permlane16_swap_b32 v{acc}, v{acc+1}")
        e(f"v_add_f32 v{acc}, v{acc}, v{acc+1}")
        e(f"v_add_f32_dpp v{acc}, v{acc}, v{acc} row_ror:8 {DPPF}")
        e(f"v_add_f32_dpp v{acc}, v{acc}, v{acc} row_ror:4 {DPPF}")
        e("s_mov_b32 exec_lo, 0x000f000f"); e("s_mov_b32 exec_hi, 0x000f000f")
        e(f"ds_write_b32 v{vA}, v{acc} offset:{ldsoff}")
        e("s_mov_b64 exec, -1")
    e(f"v_lshrrev_b32 v{vA}, 4, v{vLANE}"); e(f"v_lshlrev_b32 v{vA}, 4, v{vA}")
    e(f"v_and_b32 v{vB}, 3, v{vLANE}"); e(f"v_lshl_add_u32 v{vA}, v{vB}, 2, v{vA}")
    e(f"s_lshl_b32 s{sT1}, s{sWAVE}, 6"); e(f"v_add_u32 v{vA}, s{sT1}, v{vA}")
    for j in range(4): e(f"v_add_f32 v{G0+j}, v{G0+j}, v{G1+j}")
    reduce16(G0, L_RG)
    m_, l_ = MLR, MLR + 1
    e(f"v_max_f32_dpp v{T}, v{m_}, v{m_} quad_perm:[1,0,3,2] {DPPF}")
    e(f"v_max_f32_dpp v{T}, v{T}, v{T} quad_perm:[2,3,0,1] {DPPF}")
    e(f"v_max_f32_dpp v{T}, v{T}, v{T} row_half_mirror {DPPF}")
    e(f"v_sub_f32 v{T}, v{m_}, v{T}"); e(f"v_mul_f32 v{T}, 0x3fb8aa3b, v{T}"); e(f"v_exp_f32 v{T}, v{T}")
    e(f"v_mul_f32 v{T+1}, v{T}, v{l_}")
    e(f"v_add_f32_dpp v{T+1}, v{T+1}, v{T+1} quad_perm:[1,0,3,2] {DPPF}")
    e(f"v_add_f32_dpp v{T+1}, v{T+1}, v{T+1} quad_perm:[2,3,0,1] {DPPF}")
    e(f"v_add_f32_dpp v{T+1}, v{T+1}, v{T+1} row_half_mirror {DPPF}")
    e(f"v_rcp_f32 v{T+2}, v{T+1}")
    e(f"v_mul_f32 v{T+3}, v{T}, v{T+2}")
    e(f"v_lshlrev_b32 v{vB}, 2, v0")
    e(f"ds_write_b32 v{vB}, v{T+3} offset:{L_WT}")
    k.lwait()
    e("s_barrier")
    e(f"v_lshrrev_b32 v{vB}, 2, v0"); e(f"v_lshlrev_b32 v{vB}, 2, v{vB}")
    e(f"ds_read_b32 v{D0}, v{vB} offset:{L_WT}"); e(f"ds_read_b32 v{D0+1}, v{vB} offset:{L_WT+512}")
    e(f"v_and_b32 v{vB}, 15, v{vLANE}"); e(f"v_lshlrev_b32 v{vB}, 2, v{vB}")
    for w_ in range(8):
        e(f"ds_read_b32 v{BQ+w_}, v{vB} offset:{L_RG+64*w_}")
    k.lwait()
    GV = BQ
    e(f"v_pk_add_f32 {r2(GV)}, {r2(GV)}, {r2(GV+2)}"); e(f"v_pk_add_f32 {r2(GV+4)}, {r2(GV+4)}, {r2(GV+6)}")
    e(f"v_pk_add_f32 {r2(GV)}, {r2(GV)}, {r2(GV+4)}"); e(f"v_add_f32 v{GV}, v{GV}, v{GV+1}")
    silu(GV, GV + 4, GV + 5)
    rbf(GV, GV)
    SOUT = SV
    srd(SOUT, sOUT, None, 1024)
    stamp()
    k.vwait("XV")
    poll([Y0 + j for j in range(4)] + [Y1 + j for j in range(4)], lambda: (ld_y(), k.vmq.pop(), k.vmq.pop()), "y")
    stamp()
    for j in range(4):
        e(f"v_mul_f32 v{Y0+j}, v{Y0+j}, v{D0}"); e(f"v_fmac_f32 v{Y0+j}, v{Y1+j}, v{D0+1}")
    reduce16(Y0, L_RY)
    k.lwait()
    e("s_barrier")
    e(f"s_cmp_eq_u32 s{sWAVE}, 0")
    k.branch("s_cbranch_scc0 L_end")
    SVv = BQ + 8
    for w_ in range(8):
        e(f"ds_read_b32 v{SVv+w_}, v{vB} offset:{L_RY+64*w_}")
    k.lwait()
    e(f"v_pk_add_f32 {r2(SVv)}, {r2(SVv)}, {r2(SVv+2)}"); e(f"v_pk_add_f32 {r2(SVv+4)}, {r2(SVv+4)}, {r2(SVv+6)}")
    e(f"v_pk_add_f32 {r2(SVv)}, {r2(SVv)}, {r2(SVv+4)}"); e(f"v_add_f32 v{SVv}, v{SVv}, v{SVv+1}")
    rbf(SVv, SVv)
    e(f"v_mul_f32 v{SVv}, v{SVv}, v{GV}")
    rbf(SVv, SVv)
    e(f"v_lshlrev_b32 v{XV}, 16, v{XV}")
    e(f"v_add_f32 v{SVv}, v{SVv}, v{XV}")
    e(f"v_cvt_pk_bf16_f32 v{SVv}, v{SVv}, v{SVv}")
    e("s_mov_b64 exec, 0xffff")
    e(f"buffer_store_short v{SVv}, v{vCol}, {sr(SOUT)}, 0 offen")
    e("s_mov_b64 exec, -1")
    stamp()
    k.label("L_end")
    if stamps:
        e("s_mov_b64 exec, -1")
        e("v_mov_b32 v8, 0")
        for i, q in enumerate(STS):
            e(f"v_writelane_b32 v8, s{q}, {i}")
        e(f"v_and_b32 v9, 63, v0"); e("v_lshlrev_b32 v9, 3, v9"); e(f"v_add_u32 v9, s{sSTB}, v9"); e("v_mov_b32 v10, v8"); e("v_mov_b32 v11, 0")
        e("s_mov_b64 exec, 0xffff")
        e(f"global_store_dwordx2 v9, v[10:11], s[{sWS}:{sWS+1}]")
    k.label("L_exit")
    e("s_endpgm")
    k.raw(".p2align 6")
    k.raw("L_code_end:")
    for _ in range(64): k.raw("    s_nop 0")
    k.raw('.section .rodata,"a"'); k.raw(".p2align 6"); k.raw(f".amdhsa_kernel {NAME}_kernel")
    k.raw("  .amdhsa_next_free_vgpr 256"); k.raw("  .amdhsa_next_free_sgpr 102"); k.raw("  .amdhsa_accum_offset 256")
    k.raw("  .amdhsa_group_segment_fixed_size 0"); k.raw("  .amdhsa_kernarg_size 88"); k.raw("  .amdhsa_user_sgpr_count 2")
    k.raw("  .amdhsa_user_sgpr_kernarg_segment_ptr 1"); k.raw("  .amdhsa_system_sgpr_workgroup_id_x 1")
    k.raw("  .amdhsa_float_denorm_mode_32 3"); k.raw("  .amdhsa_float_denorm_mode_16_64 3")
    k.raw(".end_amdhsa_kernel")
    open(fname, "w").write(k.text())
    print(fname, "instrs", k.ninstr, "nops", k.nops, "stamps", nst[0])

if __name__ == "__main__":
    gen("m2.s", clrpos=4)
    gen("m2_st.s", stamps=True, clrpos=4)
    gen("m2_st2.s", stamps=2, clrpos=4)
```
